```python
import torch

def _softmax(x, axis=-1):
    return torch.softmax(x, dim=axis)
def _gelu(x):
    return torch.nn.functional.gelu(x, approximate="tanh")
def _silu(x):
    return torch.nn.functional.silu(x)
def _sigmoid(x):
    return torch.sigmoid(x)
def _layernorm(x, axis=-1, eps=1e-5):
    m = x.mean(dim=axis, keepdim=True)
    v = x.var(dim=axis, keepdim=True, unbiased=False)
    return (x - m) / torch.sqrt(v + eps)
def _scatter_add(tgt, idx, src, axis=0):
    return tgt.clone().index_add_(axis, idx, src)
def _segment_sum(src, seg, n):
    out = torch.zeros((n,) + src.shape[1:], dtype=src.dtype)
    return out.index_add_(0, seg, src)
def _pad(x, pw):
    flat = tuple(v for pair in reversed(pw) for v in pair)
    return torch.nn.functional.pad(x, flat)

kernel_name = 'sequential_preLN__sliding_block_cached__glu_gated_bilinear__decode'

def setup_inputs():

    _w = (lambda a: (lambda t: t.to(torch.bfloat16) if t.is_floating_point() else t)(torch.as_tensor(a)))
    def _A_setup():
        B, Sq, D = 1, 1, 576
        Hq, Hkv, Sk, Dh = 32, 16, 65536, 128
        assert Hq % Hkv == 0, (Hq, Hkv)
        return {
            "x": _w((lambda *s: torch.randn(*s, dtype=torch.bfloat16) * 0.05)(B, Sq, D)),
            "k_cache": _w((lambda *s: torch.randn(*s, dtype=torch.bfloat16) * 1.6)(B, Hkv, Sk, Dh)),
            "v_cache": _w((lambda *s: torch.randn(*s, dtype=torch.bfloat16) * 0.8)(B, Hkv, Sk, Dh)),
            "wq": _w((lambda *s: torch.randn(*s, dtype=torch.bfloat16) * 1.6)(D, Hq * Dh) * (D ** -0.5)),
            "wo": _w((lambda *s: torch.randn(*s, dtype=torch.bfloat16) * 0.8)(Hq * Dh, D) * ((Hq * Dh) ** -0.5)),
        }
    _A_in = _A_setup()

    def _B_setup():
        B, S, D, F = 1, 1, 576, 4608
        return {
            "x": _w((lambda *s: torch.randn(*s, dtype=torch.bfloat16) * 0.05)(B, S, D)),
            "w_gate": _w((lambda *s: torch.randn(*s, dtype=torch.bfloat16) * 0.4)(D, F) * (D ** -0.5)),
            "w_up": _w((lambda *s: torch.randn(*s, dtype=torch.bfloat16) * 0.4)(D, F) * (D ** -0.5)),
            "w_down": _w((lambda *s: torch.randn(*s, dtype=torch.bfloat16) * 0.4)(F, D) * (F ** -0.5)),
        }
    _B_in = _B_setup()

    return {
        "A_x": _A_in["x"],
        "A_k_cache": _A_in["k_cache"],
        "A_v_cache": _A_in["v_cache"],
        "A_wq": _A_in["wq"],
        "A_wo": _A_in["wo"],
        "B_x": _B_in["x"],
        "B_w_gate": _B_in["w_gate"],
        "B_w_up": _B_in["w_up"],
        "B_w_down": _B_in["w_down"],
    }

def reference(A_x, A_k_cache, A_v_cache, A_wq, A_wo, B_x, B_w_gate, B_w_up, B_w_down):
    def _A_ref(x, k_cache, v_cache, wq, wo):
        B, Sq, D = x.shape
        Hq, Dh = 32, 128
        Hkv, Sk = k_cache.shape[1], k_cache.shape[2]
        W = min(4096, max(256, Sk // 4))
        rep = Hq // Hkv
        q = (lambda x, *d: x.permute(*d))((x @ wq).reshape(B, Sq, Hq, Dh), 0, 2, 1, 3)
        k = (lambda x, n, axis: torch.repeat_interleave(x, n, dim=axis))(k_cache[:, :, Sk - W:, :], rep, axis=1)
        v = (lambda x, n, axis: torch.repeat_interleave(x, n, dim=axis))(v_cache[:, :, Sk - W:, :], rep, axis=1)
        scores = torch.einsum("bhqd,bhkd->bhqk", q, k) * (Dh ** -0.5)
        p = _softmax(scores, axis=-1)
        o = torch.einsum("bhqk,bhkd->bhqd", p, v)
        return (lambda x, *d: x.permute(*d))(o, 0, 2, 1, 3).reshape(B, Sq, Hq * Dh) @ wo

    def _B_ref(x, w_gate, w_up, w_down):
        g = torch.einsum("bsd,df->bsf", x, w_gate)
        u = torch.einsum("bsd,df->bsf", x, w_up)
        h = g * u
        return torch.einsum("bsf,fd->bsd", h, w_down)

    x = A_x
    h = x + _A_ref(_layernorm(x, axis=-1), A_k_cache, A_v_cache, A_wq, A_wo)
    h2 = h + _B_ref(_layernorm(h, axis=-1), B_w_gate, B_w_up, B_w_down)
    return h2
```

```python
KN = "sequential_preLN__sliding_block_cached__glu_gated_bilinear__decode_kernel"
HDR = open("sequential_preLN__sliding_block_cached__glu_gated_bilinear__decode.s.ref").read().split("; Override launch")[0]

A_X, A_K, A_V, A_WQ, A_WO, B_X, B_WG, B_WU, B_WD, OUT, DBG, WS = [8*i for i in range(12)]

class Asm:
    def __init__(self):
        self.lines = []
        self.n = 0
    def __call__(self, s):
        for l in s.strip("\n").split("\n"):
            self.lines.append("    " + l.strip() if not l.strip().endswith(":") else l.strip())
    def label(self, s): self.lines.append(s + ":")
    def uniq(self, p="L"):
        self.n += 1
        return f"{p}_{self.n}"
    def text(self): return "\n".join(self.lines) + "\n"

def kd(name, vgpr, sgpr, accum=None):
    if accum is None: accum = (vgpr + 3)//4*4
    return f""".p2align 6
.amdhsa_kernel {name}
  .amdhsa_next_free_vgpr {vgpr}
  .amdhsa_next_free_sgpr {sgpr}
  .amdhsa_accum_offset {accum}
  .amdhsa_group_segment_fixed_size 0
  .amdhsa_kernarg_size 96
  .amdhsa_user_sgpr_count 2
  .amdhsa_user_sgpr_kernarg_segment_ptr 1
  .amdhsa_system_sgpr_workgroup_id_x 1
  .amdhsa_float_denorm_mode_32 3
.end_amdhsa_kernel
"""

def single(body, grid, block, lds, vgpr, sgpr=96, accum=None, name=KN):
    return (HDR + f"; @launch grid=({grid},1,1) block=({block},1,1) lds={lds}\n"
        + '.amdgcn_target "amdgcn-amd-amdhsa--gfx950"\n.text\n'
        + f".globl {name}\n.p2align 8\n.type {name},@function\n{name}:\n" + body
        + '.section .rodata,"a"\n' + kd(name, vgpr, sgpr, accum))

def multi(kernels):
    s = HDR
    for k in kernels:
        s += f"; @launch kernel={k['name']} grid=({k['grid']},1,1) block=({k['block']},1,1) lds={k['lds']}\n"
    s += '.amdgcn_target "amdgcn-amd-amdhsa--gfx950"\n.text\n'
    seen = set()
    for k in kernels:
        if k['name'] in seen: continue
        seen.add(k['name'])
        s += f".globl {k['name']}\n.p2align 8\n.type {k['name']},@function\n{k['name']}:\n" + k['body']
    s += '.section .rodata,"a"\n'
    seen = set()
    for k in kernels:
        if k['name'] in seen: continue
        seen.add(k['name'])
        s += kd(k['name'], k['vgpr'], k.get('sgpr', 96), k.get('accum'))
    return s
```

```python
import sys
from asmlib import *

LK = 0; LV = 65536; LSP = 131072
LXN = 149504; LQ = 150784; LP = 151296; LMAX = 152320; LCNT = 152384
LOX = 152640; LOB = 156736; LHN = 157248; LGU = 158528
LDS_BYTES = 163840
C_WQ, C_SPFREE, C_Q, C_K0, C_MAX, C_KFREE, C_P, C_V0, C_VFREE = 0, 1, 2, 3, 7, 8, 9, 10, 14
W_EPOCH = 0; W_QP = 0x1000; W_OP = 0x20000; W_HP = 0x80000; W_H = 0x90000; W_FP = 0xA0000; W_TS = 0x200000
OPSTRIDE = 1280
LOG2E = 0x3fb8aa3b
SCALE = 0x3db504f3
EPS = 0x3727c5ac
INV576 = 0x3ae38e39

class G:
    def __init__(self, ts=False, D=9, rotmul=13, spin_cap=200000, poll_cap=20000):
        self.a = Asm(); self.ts = ts; self.D = D; self.rotmul = rotmul
        self.spin_cap = spin_cap; self.poll_cap = poll_cap
        self.nst = 0
    def __call__(self, s): self.a(s)
    def nop(self, n):
        while n > 0:
            k = min(n, 16); self.a(f"s_nop {k-1}"); n -= k
    def stamp(self, i):
        if self.ts: self.a(f"s_memrealtime s[{60+2*i}:{61+2*i}]")
    def signal(self, cid):
        self.a(f"""
        s_mov_b64 exec, 1
        ds_add_u32 v2, v3 offset:{4*cid}
        s_mov_b64 exec, -1
        """)
    def waitcnt_lds(self, cid, val):
        L = self.a.uniq("Lsp"); Lx = self.a.uniq("Lspx")
        self.a(f"""
        {L}:
        ds_read_b32 v4, v2 offset:{4*cid}
        s_waitcnt lgkmcnt(0)
        v_readfirstlane_b32 s59, v4
        s_cmp_ge_u32 s59, {val}
        s_cbranch_scc1 {Lx}
        s_cmp_eq_u32 s57, 0
        s_cbranch_scc1 {Lx}
        s_sub_u32 s57, s57, 1
        s_sleep 1
        s_branch {L}
        {Lx}:
        """)

def gen(ts=False, D=9, rotmul=13):
    g = G(ts=ts, D=D, rotmul=rotmul)
    a = g.a
    g.stamp(0)
    a(f"""
    s_cmp_ge_u32 s2, 256
    s_cbranch_scc1 L_end
    s_load_dwordx16 s[4:19], s[0:1], 0
    s_load_dwordx8 s[20:27], s[0:1], 64
    v_and_b32 v1, 63, v0                 ; lane
    v_lshrrev_b32 v4, 6, v0
    v_mov_b32 v2, {LCNT}
    v_readfirstlane_b32 s30, v4
    v_mov_b32 v3, 1
    s_and_b32 s28, s2, 7
    s_lshl_b32 s28, s28, 1
    s_lshr_b32 s32, s2, 3
    s_and_b32 s32, s32, 1
    s_add_u32 s28, s28, s32
    s_lshr_b32 s29, s2, 4
    s_mov_b32 s57, {g.spin_cap}
    s_mov_b32 s58, {g.poll_cap}
    v_lshl_add_u32 v4, v1, 2, v2
    v_mov_b32 v5, 0
    ds_write_b32 v4, v5
    s_waitcnt lgkmcnt(0)
    s_barrier
    """)
    g.stamp(1)
    a(f"""
    s_cmp_ge_u32 s30, 4
    s_cbranch_scc1 L_compute
    """)
    loader(g)
    a("L_compute:")
    compute(g)
    a("L_end:\ns_endpgm")
    return a.text()

def srd(g, r, plo, size):
    g(f"s_mov_b32 s{r}, s{plo}\ns_mov_b32 s{r+1}, s{plo+1}\ns_mov_b32 s{r+2}, {size}\ns_mov_b32 s{r+3}, 0x20000")

class LoaderSeq:
    def __init__(self, g):
        self.g = g; self.n = 0; self.pending = []
    def load(self, vo, srdr, soff_code, m0_code):
        g = self.g
        while self.pending and self.n - 1 - self.pending[0][0] >= g.D:
            idx, cid = self.pending.pop(0)
            g(f"s_waitcnt vmcnt({self.n-1-idx})")
            g.signal(cid)
        g(soff_code)
        g(m0_code)
        g.nop(1)
        g(f"buffer_load_dwordx4 v{vo}, s[{srdr}:{srdr+3}], s34 offen nt lds")
        self.n += 1
    def sig(self, cid): self.pending.append((self.n-1, cid))
    def flush(self):
        g = self.g
        for idx, cid in self.pending:
            g(f"s_waitcnt vmcnt({self.n-1-idx})")
            g.signal(cid)
        self.pending = []
    def fork(self):
        c = LoaderSeq(self.g); c.n = self.n; c.pending = list(self.pending); return c

def loader(g):
    a = g.a
    a(f"""
    s_lshl_b32 s32, s28, 24              ; head*16MiB
    s_add_u32 s32, s32, {(65536-4096)*256}
    s_lshl_b32 s33, s29, 16              ; split*64KiB
    s_add_u32 s32, s32, s33
    s_add_u32 s36, s6, s32
    s_addc_u32 s37, s7, 0
    s_mov_b32 s38, 65536
    s_mov_b32 s39, 0x20000
    s_add_u32 s40, s8, s32
    s_addc_u32 s41, s9, 0
    s_mov_b32 s42, 65536
    s_mov_b32 s43, 0x20000
    """)
    srd(g, 44, 10, 576*4096*2)
    a(f"""
    ; ---- wq voffset (8 rows x 128B): row=l>>3, chunk=(l&7)^(((l>>4)&3)<<1)
    v_lshrrev_b32 v6, 3, v1
    v_lshlrev_b32 v10, 13, v6            ; row*8192
    v_lshrrev_b32 v7, 4, v1
    v_and_b32 v7, 3, v7
    v_lshlrev_b32 v7, 1, v7
    v_and_b32 v8, 7, v1
    v_xor_b32 v8, v8, v7
    v_lshlrev_b32 v8, 4, v8
    v_add_u32 v10, v10, v8
    s_lshr_b32 s32, s29, 2
    s_mul_i32 s32, s32, {144*8192}
    s_lshl_b32 s33, s28, 9
    s_add_u32 s32, s32, s33
    s_and_b32 s33, s29, 3
    s_lshl_b32 s33, s33, 7
    s_add_u32 s48, s32, s33
    s_lshl_b32 s33, s30, 16              ; w*8*8192
    s_add_u32 s48, s48, s33
    s_lshl_b32 s49, s30, 10              ; w*1024
    """)
    L = LoaderSeq(g)
    for m in range(5):
        lab = None
        if m == 4:
            lab = a.uniq("Lwq"); a(f"s_cmp_lt_u32 s30, 2\ns_cbranch_scc0 {lab}")
        L.load(10, 44, f"s_add_u32 s34, s48, {m*4*8*8192}", f"s_add_u32 m0, s49, {LSP + m*4096}")
        if lab: a.label(lab)
    L.sig(C_WQ)
    a(f"""
    ; ---- K/V voffsets: row=l>>4 ; K chunk=(l&15)^(4w+(l>>4)) ; V chunk=(l&15)^(((4(w&1)+(l>>4)))<<1)
    v_lshrrev_b32 v6, 4, v1
    v_and_b32 v7, 15, v1
    s_lshl_b32 s32, s30, 2
    v_add_u32 v9, s32, v6
    v_xor_b32 v9, v9, v7
    v_lshlrev_b32 v9, 4, v9
    v_lshl_add_u32 v11, v6, 8, v9        ; v11 = K voffset
    s_and_b32 s32, s30, 1
    s_lshl_b32 s32, s32, 2
    v_add_u32 v9, s32, v6
    v_lshlrev_b32 v9, 1, v9
    v_xor_b32 v9, v9, v7
    v_lshlrev_b32 v9, 4, v9
    v_lshl_add_u32 v12, v6, 8, v9        ; v12 = V voffset
    s_mul_i32 s50, s2, {g.rotmul}
    s_add_u32 s50, s50, s30              ; rot + w
    """)
    for (vo, sr, base, c0) in ((11, 36, LK, C_K0), (12, 40, LV, C_V0)):
        for i in range(16):
            L.load(vo, sr, f"s_add_u32 s34, s50, {4*i}\ns_and_b32 s34, s34, 63\ns_lshl_b32 s34, s34, 10",
                   f"s_add_u32 m0, s49, {base + i*4096}")
            if i % 4 == 3: L.sig(c0 + i//4)
    a(f"""
    s_cmp_lt_u32 s29, 9
    s_cbranch_scc1 L_ld_ffn
    s_cmp_lt_u32 s29, 15
    s_cbranch_scc1 L_ld_wo
    """)
    Ls = L.fork(); Ls.flush()
    a("s_waitcnt vmcnt(0) lgkmcnt(0)\ns_endpgm")
    a("L_ld_wo:")
    Lw = L.fork()
    srd(g, 44, 12, 4096*576*2)
    a(f"""
    ; three voffsets: p = 64m + l ; row = p/12 ; pos = p%12 ; gchunk = pos ^ (((row>>2)&1)<<1)
    """)
    for m in range(3):
        a(f"""
        v_add_u32 v6, {64*m}, v1
        v_mul_u32_u24 v7, 43691, v6
        v_lshrrev_b32 v7, 19, v7            ; row
        v_mul_u32_u24 v9, 12, v7
        v_sub_u32 v9, v6, v9                ; pos
        v_lshrrev_b32 v13, 2, v7
        v_and_b32 v13, 1, v13
        v_lshlrev_b32 v13, 1, v13
        v_xor_b32 v9, v9, v13
        v_lshlrev_b32 v9, 4, v9
        v_mul_u32_u24 v7, 1152, v7
        v_add_u32 v{14+m}, v7, v9
        """)
    a(f"""
    s_mul_i32 s48, s28, {256*1152}
    s_sub_u32 s32, s29, 9
    s_mul_i32 s32, s32, 192
    s_add_u32 s48, s48, s32
    """)
    a(f"s_mul_i32 s51, s30, {16*1152}\ns_add_u32 s48, s48, s51\ns_mul_i32 s51, s30, 3072")
    g.waitcnt_lds(C_SPFREE, 4)
    a(f"s_mov_b32 s52, {LK - 2*3072}\ns_cmp_lt_u32 s30, 2\ns_cselect_b32 s52, {LSP + 4*3072}, s52")
    for bb in range(4):
        if bb == 1:
            g.waitcnt_lds(C_KFREE, 4)
        for m in range(3):
            if bb == 0:   m0 = f"s_add_u32 m0, s51, {LSP + m*1024}"
            elif bb == 1: m0 = f"s_add_u32 s35, s51, s52\ns_add_u32 m0, s35, {m*1024}"
            else:         m0 = f"s_add_u32 m0, s51, {LK + (4*bb-6)*3072 + m*1024}"
            Lw.load(14+m, 44, f"s_add_u32 s34, s48, {bb*4*16*1152}", m0)
    Lw.flush()
    a("s_waitcnt vmcnt(0) lgkmcnt(0)\ns_endpgm")
    a("L_ld_ffn:")
    Lf = L.fork()
    srd(g, 36, 16, 576*4608*2)
    srd(g, 44, 18, 576*4608*2)
    a(f"""
    v_lshrrev_b32 v6, 2, v1
    v_mul_u32_u24 v7, 9216, v6
    v_lshrrev_b32 v9, 4, v1
    v_and_b32 v9, 1, v9
    v_lshlrev_b32 v9, 1, v9
    v_and_b32 v13, 3, v1
    v_xor_b32 v9, v9, v13
    v_lshlrev_b32 v9, 4, v9
    v_add_u32 v14, v7, v9
    v_lshrrev_b32 v6, 3, v1
    v_mul_u32_u24 v7, 1152, v6
    v_add_u32 v15, v7, v8
    s_mul_i32 s51, s28, 9
    s_add_u32 s51, s51, s29              ; f
    s_lshl_b32 s48, s51, 6               ; f*64
    s_mul_i32 s32, s30, {16*9216}
    s_add_u32 s48, s48, s32
    s_mul_i32 s52, s51, {32*1152}
    s_mul_i32 s32, s30, {8*1152}
    s_add_u32 s52, s52, s32
    """)
    g.waitcnt_lds(C_SPFREE, 4)
    a(f"s_mov_b32 s53, {LK - 2*1024}\ns_cmp_lt_u32 s30, 2\ns_cselect_b32 s53, {LSP + 16*1024}, s53")
    for m in range(9):
        if m == 4: g.waitcnt_lds(C_KFREE, 4)
        if m < 4: m0 = f"s_add_u32 m0, s49, {LSP + m*4096}"
        elif m == 4: m0 = f"s_add_u32 m0, s49, s53"
        else: m0 = f"s_add_u32 m0, s49, {LK + (4*m-18)*1024}"
        Lf.load(14, 36, f"s_add_u32 s34, s48, {m*4*16*9216}", m0)
    for m in range(9):
        Lf.load(14, 44, f"s_add_u32 s34, s48, {m*4*16*9216}", f"s_add_u32 m0, s49, {LK + 18432 + m*4096}")
    srd(g, 36, 20, 4608*576*2)
    g.waitcnt_lds(C_VFREE, 4)
    for c9 in range(9):
        Lf.load(15, 36, f"s_add_u32 s34, s52, {c9*128}", f"s_add_u32 m0, s49, {LV + c9*4096}")
    Lf.flush()
    a("s_waitcnt vmcnt(0) lgkmcnt(0)\ns_endpgm")

def rowsum16(g, regs, op="v_add_f32"):
    for sh in (8, 4, 2, 1):
        g.nop(2)
        for r in regs:
            g(f"{op}_dpp v{r}, v{r}, v{r} row_ror:{sh} row_mask:0xf bank_mask:0xf")
def crossrows(g, regs, tmp, op="v_add_f32"):
    for sw in ("v_permlane16_swap_b32", "v_permlane32_swap_b32"):
        for r in regs:
            g(f"v_mov_b32 v{tmp}, v{r}")
            g.nop(2)
            g(f"{sw} v{tmp}, v{r}")
            g.nop(1)
            g(f"{op} v{r}, v{r}, v{tmp}")
def bf16r(g, dst, src, tmp):
    g(f"v_cvt_pk_bf16_f32 v{tmp}, v{src}, v{src}\nv_and_b32 v{dst}, 0xffff0000, v{tmp}")

def layernorm(g, vals, masks, tbase):
    t0, t1, t2, t3 = tbase, tbase+1, tbase+2, tbase+3
    a = g
    a(f"v_add_f32 v{t0}, v{vals[0]}, v{vals[1]}")
    for r in vals[2:]: a(f"v_add_f32 v{t0}, v{t0}, v{r}")
    rowsum16(g, [t0]); crossrows(g, [t0], t1)
    a(f"v_mul_f32 v{t0}, {INV576:#x}, v{t0}")
    a(f"v_mov_b32 v{t2}, 0")
    for r in vals:
        a(f"v_sub_f32 v{t1}, v{r}, v{t0}")
        if r in masks:
            a(f"v_cndmask_b32 v{t1}, 0, v{t1}, {masks[r]}")
        a(f"v_fmac_f32 v{t2}, v{t1}, v{t1}")
    rowsum16(g, [t2]); crossrows(g, [t2], t1)
    a(f"v_mul_f32 v{t2}, {INV576:#x}, v{t2}")
    bf16r(g, t0, t0, t1)
    bf16r(g, t2, t2, t1)
    a(f"v_add_f32 v{t2}, {EPS:#x}, v{t2}")
    bf16r(g, t2, t2, t1)
    a(f"v_sqrt_f32 v{t2}, v{t2}")
    g.nop(1)
    bf16r(g, t2, t2, t1)
    a(f"v_rcp_f32 v{t2}, v{t2}")
    for i in range(0, len(vals), 2):
        r0, r1 = vals[i], vals[i+1]
        a(f"v_sub_f32 v{r0}, v{r0}, v{t0}\nv_sub_f32 v{r1}, v{r1}, v{t0}")
        a(f"v_cvt_pk_bf16_f32 v{t1}, v{r0}, v{r1}")
        a(f"v_lshlrev_b32 v{r0}, 16, v{t1}\nv_and_b32 v{r1}, 0xffff0000, v{t1}")
        a(f"v_mul_f32 v{r0}, v{r0}, v{t2}\nv_mul_f32 v{r1}, v{r1}, v{t2}")

def poll(g, issue, words, acc, extra_wait="vmcnt(0)"):
    L = g.a.uniq("Lpl"); Lx = g.a.uniq("Lplx")
    g.a.label(L)
    issue()
    g(f"s_waitcnt {extra_wait}")
    g(f"v_mov_b32 v{acc}, 0")
    for b in words:
        for i in range(4):
            g(f"v_msad_u8 v{acc}, v{b+i}, s{52+i}, v{acc}")
    g(f"""
    v_cmp_ne_u32 vcc, 0, v{acc}
    s_cbranch_vccz {Lx}
    s_cmp_eq_u32 s58, 0
    s_cbranch_scc1 {Lx}
    s_sub_u32 s58, s58, 1
    s_branch {L}
    {Lx}:
    """)
def tagins(g, base, dst=None):
    if dst is None: dst = base
    for i in range(4):
        g(f"v_bfi_b32 v{dst+i}, v5, s{52+i}, v{base+i}")
def unmask(g, base):
    for i in range(4):
        g(f"v_and_b32 v{base+i}, 0xffffff00, v{base+i}")

def wsbase(g, dst, off_code_sreg=None, const=0):
    if off_code_sreg is not None:
        g(f"s_add_u32 s{dst}, s26, s{off_code_sreg}\ns_addc_u32 s{dst+1}, s27, 0")
        if const: g(f"s_add_u32 s{dst}, s{dst}, {const}\ns_addc_u32 s{dst+1}, s{dst+1}, 0")
    else:
        g(f"s_add_u32 s{dst}, s26, {const}\ns_addc_u32 s{dst+1}, s27, 0")

def compute(g):
    a = g.a
    a(f"""
    s_setprio 3
    s_sub_u32 s31, s30, 4                ; c
    v_lshlrev_b32 v10, 4, v1
    v_mov_b32 v11, 0
    """)
    srd(g, 36, 4, 1152)
    a(f"""
    buffer_load_dwordx4 v[16:19], v10, s[36:39], 0 offen
    buffer_load_dwordx4 v[20:23], v10, s[36:39], 0 offen offset:1024
    global_load_dword v24, v11, s[26:27] sc1
    v_mov_b32 v5, 0xff
    v_lshrrev_b32 v6, 4, v1
    v_and_b32 v7, 15, v1
    v_lshrrev_b32 v8, 2, v7
    v_and_b32 v9, 3, v1
    s_mov_b32 s40, 0x00010001
    s_mov_b32 s41, 0x00010001            ; s[40:41] lanes n==0
    s_mov_b32 s42, 0x00030003
    s_mov_b32 s43, 0x00030003            ; s[42:43] lanes n<2
    s_mov_b32 s44, 0xff
    s_mov_b32 s45, 0                     ; s[44:45] lanes < 8
    s_mov_b32 s46, 0xffff
    s_mov_b32 s47, 0                     ; s[46:47] lanes < 16
    s_waitcnt vmcnt(0)
    v_readfirstlane_b32 s32, v24
    s_mul_i32 s32, s32, 1664525
    s_add_u32 s32, s32, 1013904223
    s_or_b32 s56, s32, 0x01010101        ; tag
    s_and_b32 s52, s56, 0xff
    s_bfe_u32 s53, s56, 0x80008
    s_bfe_u32 s54, s56, 0x80010
    s_lshr_b32 s55, s56, 24
    """)
    g.stamp(2)
    for i in range(8):
        a(f"v_lshlrev_b32 v{32+2*i}, 16, v{16+i}\nv_and_b32 v{33+2*i}, 0xffff0000, v{16+i}")
    vals = list(range(32, 48))
    layernorm(g, vals, {r: "s[44:45]" for r in range(40, 48)}, 26)
    for i in range(8):
        a(f"v_cvt_pk_bf16_f32 v{16+i}, v{32+2*i}, v{33+2*i}")
    a(f"""
    v_add_u32 v12, {LXN}, v10
    ds_write_b128 v12, v[16:19]
    s_mov_b64 exec, s[44:45]
    ds_write_b128 v12, v[20:23] offset:1024
    s_mov_b64 exec, -1
    ; ---- q partial addresses
    v_lshl_add_u32 v13, v6, 2, v8        ; 4g+r'
    v_lshrrev_b32 v14, 1, v13
    v_and_b32 v14, 3, v14
    v_lshlrev_b32 v14, 1, v14
    v_lshrrev_b32 v15, 1, v9             ; c'>>1
    s_lshl_b32 s32, s31, 1
    v_add_u32 v25, s32, v15
    v_xor_b32 v25, v25, v14
    v_lshlrev_b32 v25, 4, v25
    v_lshl_add_u32 v25, v13, 7, v25
    v_and_b32 v26, 1, v9
    v_lshl_add_u32 v25, v26, 3, v25
    v_add_u32 v27, {LSP}, v25
    s_lshr_b32 s32, s29, 2
    s_mul_i32 s32, s32, 288
    s_add_u32 s32, s32, {LXN}
    v_lshlrev_b32 v28, 3, v6
    v_add_u32 v28, s32, v28
    s_waitcnt lgkmcnt(0)
    """)
    g.waitcnt_lds(C_WQ, 4)
    g.stamp(3)
    for st in range(9):
        a(f"ds_read_b64_tr_b16 v[{32+2*st}:{33+2*st}], v27 offset:{st*2048}")
        a(f"ds_read_b64 v[{52+2*st}:{53+2*st}], v28 offset:{st*32}")
    a("s_waitcnt lgkmcnt(0)")
    g.signal(C_SPFREE)
    for st in range(9):
        c = "0" if st == 0 else "v[72:75]"
        a(f"v_mfma_f32_16x16x16_bf16 v[72:75], v[{32+2*st}:{33+2*st}], v[{52+2*st}:{53+2*st}], {c}")
    a(f"""
    s_lshl_b32 s32, s28, 12
    s_lshr_b32 s33, s29, 2
    s_lshl_b32 s33, s33, 10
    s_add_u32 s32, s32, s33
    s_and_b32 s33, s29, 3
    s_lshl_b32 s33, s33, 8
    s_add_u32 s32, s32, s33
    s_lshl_b32 s33, s31, 6
    s_add_u32 s32, s32, s33
    """)
    wsbase(g, 48, 32, W_QP)
    a("v_lshlrev_b32 v29, 4, v6          ; g*16 (kept: v29)")
    g.nop(8)
    tagins(g, 72)
    a(f"""
    s_mov_b64 exec, s[40:41]
    global_store_dwordx4 v29, v[72:75], s[48:49] sc1
    s_mov_b64 exec, -1
    """)
    g.stamp(4)
    a("s_cmp_eq_u32 s31, 0\ns_cbranch_scc0 L_qdone")
    a("s_lshl_b32 s32, s28, 12")
    wsbase(g, 48, 32, W_QP)
    def issue_q():
        for kb in range(4):
            a(f"global_load_dwordx4 v[{32+4*kb}:{35+4*kb}], v10, s[48:49] offset:{kb*1024} sc1")
    poll(g, issue_q, [32, 36, 40, 44], 30)
    for kb in range(4): unmask(g, 32+4*kb)
    for i in range(4):
        a(f"v_add_f32 v{32+i}, v{32+i}, v{36+i}\nv_add_f32 v{40+i}, v{40+i}, v{44+i}\nv_add_f32 v{32+i}, v{32+i}, v{40+i}")
    a(f"""
    v_cvt_pk_bf16_f32 v32, v32, v33
    v_cvt_pk_bf16_f32 v33, v34, v35
    v_lshlrev_b32 v30, 3, v1
    v_add_u32 v30, {LQ}, v30
    ds_write_b64 v30, v[32:33]
    s_waitcnt lgkmcnt(0)
    """)
    g.signal(C_Q)
    a("L_qdone:")
    g.waitcnt_lds(C_Q, 1)
    g.stamp(5)
    a(f"""
    v_and_b32 v30, 1, v7
    v_lshlrev_b32 v30, 8, v30
    v_lshl_add_u32 v30, v6, 4, v30
    v_add_u32 v30, {LQ}, v30
    """)
    for st in range(4):
        a(f"ds_read_b128 v[{32+4*st}:{35+4*st}], v30 offset:{st*64}")
    a(f"""
    s_lshl_b32 s32, s31, 14              ; 64c*256
    v_lshlrev_b32 v31, 8, v7             ; key*256
    v_add_u32 v31, s32, v31
    """)
    for st in range(4):
        a(f"v_add_u32 v{48+st}, {4*st}, v6\nv_xor_b32 v{48+st}, v{48+st}, v7\nv_lshl_add_u32 v{48+st}, v{48+st}, 4, v31")
    L = a.uniq("Lk"); Lx = a.uniq("Lkx")
    a(f"""
    s_lshl_b32 s32, s31, 2
    s_add_u32 s32, s32, {LCNT + 4*C_K0}
    v_mov_b32 v52, s32
    {L}:
    ds_read_b32 v4, v52
    s_waitcnt lgkmcnt(0)
    v_readfirstlane_b32 s59, v4
    s_cmp_ge_u32 s59, 4
    s_cbranch_scc1 {Lx}
    s_cmp_eq_u32 s57, 0
    s_cbranch_scc1 {Lx}
    s_sub_u32 s57, s57, 1
    s_sleep 1
    s_branch {L}
    {Lx}:
    """)
    g.stamp(6)
    for t in range(4):
        for st in range(4):
            b = 64 + (t*4+st)*4
            a(f"ds_read_b128 v[{b}:{b+3}], v{48+st} offset:{LK + t*4096}")
    a("s_waitcnt lgkmcnt(0)")
    g.signal(C_KFREE)
    for st in range(4):
        for t in range(4):
            b = 64 + (t*4+st)*4
            c = "0" if st == 0 else f"v[{128+4*t}:{131+4*t}]"
            a(f"v_mfma_f32_16x16x32_bf16 v[{128+4*t}:{131+4*t}], v[{b}:{b+3}], v[{32+4*st}:{35+4*st}], {c}")
    a(f"s_mov_b32 s32, {SCALE:#x}\ns_mov_b32 s33, {LOG2E:#x}")
    g.nop(8)
    for i in range(0, 16, 2):
        r0, r1 = 128+i, 129+i
        a(f"""
        v_cvt_pk_bf16_f32 v53, v{r0}, v{r1}
        v_lshlrev_b32 v{r0}, 16, v53
        v_and_b32 v{r1}, 0xffff0000, v53
        v_mul_f32 v{r0}, s32, v{r0}
        v_mul_f32 v{r1}, s32, v{r1}
        v_cvt_pk_bf16_f32 v53, v{r0}, v{r1}
        v_lshlrev_b32 v{r0}, 16, v53
        v_and_b32 v{r1}, 0xffff0000, v53
        """)
    a(f"v_max3_f32 v54, v128, v129, v130")
    for i in range(131, 143, 2):
        a(f"v_max3_f32 v54, v54, v{i}, v{i+1}")
    a("v_max_f32 v54, v54, v143")
    crossrows(g, [54], 55, op="v_max_f32")
    a(f"""
    v_and_b32 v55, 1, v7
    v_lshlrev_b32 v55, 4, v55
    v_add_u32 v55, {LMAX}, v55
    s_lshl_b32 s34, s31, 2
    v_add_u32 v56, s34, v55
    s_mov_b64 exec, 3
    ds_write_b32 v56, v54
    s_mov_b64 exec, -1
    s_waitcnt lgkmcnt(0)
    """)
    g.signal(C_MAX)
    g.waitcnt_lds(C_MAX, 4)
    a(f"""
    ds_read_b128 v[56:59], v55
    s_waitcnt lgkmcnt(0)
    v_max3_f32 v54, v56, v57, v58
    v_max_f32 v54, v54, v59
    v_mul_f32 v54, s33, v54
    v_and_b32 v54, 0xffffff00, v54
    """)
    for i in range(16):
        a(f"v_fma_f32 v{128+i}, v{128+i}, s33, -v54")
    for i in range(16):
        a(f"v_exp_f32 v{128+i}, v{128+i}")
    g.nop(1)
    for i in range(8):
        a(f"v_cvt_pk_bf16_f32 v{64+i}, v{128+2*i}, v{129+2*i}")
    a(f"""
    v_and_b32 v56, 1, v7
    v_lshlrev_b32 v56, 6, v56
    v_lshl_add_u32 v56, v6, 4, v56       ; h*64 + g*16
    v_add_u32 v56, {LP}, v56
    s_lshl_b32 s34, s31, 8
    v_add_u32 v57, s34, v56
    s_mov_b64 exec, s[42:43]
    ds_write_b128 v57, v[64:67]
    ds_write_b128 v57, v[68:71] offset:128
    s_mov_b64 exec, -1
    s_waitcnt lgkmcnt(0)
    """)
    g.signal(C_P)
    g.waitcnt_lds(C_P, 4)
    for k in range(8):
        a(f"ds_read_b128 v[{64+4*k}:{67+4*k}], v56 offset:{k*128}")
    a(f"""
    v_lshl_add_u32 v57, v6, 2, v8        ; row = 4g + r'
    v_and_b32 v58, 7, v57
    v_lshlrev_b32 v58, 1, v58            ; (row&7)<<1
    v_lshrrev_b32 v59, 1, v9             ; c'>>1
    s_lshl_b32 s34, s31, 2               ; 2t = 4c
    v_add_u32 v60, s34, v59
    v_xor_b32 v61, v60, v58
    v_add_u32 v60, 2, v60
    v_xor_b32 v62, v60, v58
    v_lshlrev_b32 v57, 8, v57
    v_and_b32 v59, 1, v9
    v_lshl_add_u32 v57, v59, 3, v57
    v_add_u32 v57, {LV}, v57
    v_lshl_add_u32 v61, v61, 4, v57      ; tile 2c
    v_lshl_add_u32 v62, v62, 4, v57      ; tile 2c+1
    v_mov_b32 v96, 0x3f803f80
    v_mov_b32 v97, 0x3f803f80
    v_mov_b32 v98, 0x3f803f80
    v_mov_b32 v99, 0x3f803f80
    s_waitcnt lgkmcnt(0)
    """)
    for k in range(8):
        c = "0" if k == 0 else "v[108:111]"
        a(f"v_mfma_f32_16x16x32_bf16 v[108:111], v[96:99], v[{64+4*k}:{67+4*k}], {c}")
    g.stamp(7)
    for ch in range(4):
        g.waitcnt_lds(C_V0 + ch, 4)
        for kk in range(2):
            k = 2*ch + kk
            for t in range(2):
                b = 112 + (kk*2+t)*4
                a(f"ds_read_b64_tr_b16 v[{b}:{b+1}], v{61+t} offset:{k*8192}")
                a(f"ds_read_b64_tr_b16 v[{b+2}:{b+3}], v{61+t} offset:{k*8192+4096}")
        a("s_waitcnt lgkmcnt(0)")
        for kk in range(2):
            k = 2*ch + kk
            for t in range(2):
                b = 112 + (kk*2+t)*4
                c = "0" if k == 0 else f"v[{100+4*t}:{103+4*t}]"
                a(f"v_mfma_f32_16x16x32_bf16 v[{100+4*t}:{103+4*t}], v[{b}:{b+3}], v[{64+4*k}:{67+4*k}], {c}")
    g.signal(C_VFREE)
    a(f"""
    s_lshl_b32 s32, s28, 4
    s_add_u32 s32, s32, s29
    s_mul_i32 s32, s32, {OPSTRIDE}
    s_lshl_b32 s33, s31, 7
    s_add_u32 s33, s33, s32
    """)
    wsbase(g, 48, 33, W_OP)
    a(f"""
    v_and_b32 v57, 1, v7
    v_lshlrev_b32 v57, 9, v57
    v_add_u32 v57, v57, v29              ; h*512 + g*16
    """)
    g.nop(8)
    tagins(g, 100); tagins(g, 104)
    a(f"""
    s_mov_b64 exec, s[42:43]
    global_store_dwordx4 v57, v[100:103], s[48:49] sc1
    global_store_dwordx4 v57, v[104:107], s[48:49] offset:64 sc1
    s_mov_b64 exec, -1
    """)
    a(f"""
    s_cmp_eq_u32 s31, 0
    s_cbranch_scc0 L_nostat
    v_mov_b32 v112, v54
    v_mov_b32 v113, v108
    s_nop 1
    v_mov_b32_dpp v114, v54 quad_perm:[1,1,1,1] row_mask:0xf bank_mask:0xf
    v_mov_b32_dpp v115, v108 quad_perm:[1,1,1,1] row_mask:0xf bank_mask:0xf
    """)
    tagins(g, 112)
    wsbase(g, 50, 32, W_OP + 1024)
    a(f"""
    s_mov_b64 exec, 1
    global_store_dwordx4 v11, v[112:115], s[50:51] sc1
    s_mov_b64 exec, -1
    L_nostat:
    """)
    g.stamp(8)
    a(f"""
    s_cmp_lt_u32 s29, 9
    s_cbranch_scc1 L_ffn
    s_cmp_lt_u32 s29, 15
    s_cbranch_scc1 L_wo
    """)
    a("s_cmp_eq_u32 s31, 0\ns_cbranch_scc0 L_fin")
    a(f"""
    s_mul_i32 s32, s28, 72               ; 9j*8 bytes
    v_lshlrev_b32 v30, 3, v6             ; row*8
    v_add_u32 v30, s32, v30
    v_mov_b32 v31, s32
    buffer_load_dwordx2 v[48:49], v30, s[36:39], 0 offen
    buffer_load_dwordx2 v[50:51], v30, s[36:39], 0 offen offset:32
    buffer_load_dwordx2 v[52:53], v31, s[36:39], 0 offen offset:64
    s_mul_i32 s32, s28, {9*256}
    v_lshlrev_b32 v31, 4, v7             ; (lane&15)*16
    """)
    wsbase(g, 48, 32, W_HP)
    def issue_b1():
        a(f"global_load_dwordx4 v[32:35], v10, s[48:49] sc1")
        a(f"global_load_dwordx4 v[36:39], v10, s[48:49] offset:1024 sc1")
        a(f"global_load_dwordx4 v[40:43], v31, s[48:49] offset:2048 sc1")
    poll(g, issue_b1, [32, 36, 40], 30)
    g.stamp(9)
    for b in (32, 36, 40): unmask(g, b)
    rowsum16(g, list(range(32, 44)))
    for i in range(3):
        b = 32+4*i; xr = 48+2*i
        a(f"""
        v_cvt_pk_bf16_f32 v54, v{b}, v{b+1}
        v_cvt_pk_bf16_f32 v55, v{b+2}, v{b+3}
        v_lshlrev_b32 v{b}, 16, v54
        v_and_b32 v{b+1}, 0xffff0000, v54
        v_lshlrev_b32 v{b+2}, 16, v55
        v_and_b32 v{b+3}, 0xffff0000, v55
        v_lshlrev_b32 v56, 16, v{xr}
        v_and_b32 v57, 0xffff0000, v{xr}
        v_lshlrev_b32 v58, 16, v{xr+1}
        v_and_b32 v59, 0xffff0000, v{xr+1}
        v_add_f32 v{b}, v{b}, v56
        v_add_f32 v{b+1}, v{b+1}, v57
        v_add_f32 v{b+2}, v{b+2}, v58
        v_add_f32 v{b+3}, v{b+3}, v59
        v_cvt_pk_bf16_f32 v54, v{b}, v{b+1}
        v_cvt_pk_bf16_f32 v55, v{b+2}, v{b+3}
        v_lshlrev_b32 v{b}, 16, v54
        v_and_b32 v{b+1}, 0xffff0000, v54
        v_lshlrev_b32 v{b+2}, 16, v55
        v_and_b32 v{b+3}, 0xffff0000, v55
        """)
        tagins(g, b)
    a("s_mul_i32 s32, s28, 144")
    wsbase(g, 48, 32, W_H)
    a(f"""
    s_mov_b64 exec, s[40:41]
    global_store_dwordx4 v29, v[32:35], s[48:49] sc1
    global_store_dwordx4 v29, v[36:39], s[48:49] offset:64 sc1
    s_mov_b64 exec, 1
    global_store_dwordx4 v11, v[40:43], s[48:49] offset:128 sc1
    s_mov_b64 exec, -1
    """)
    g.stamp(10)
    a("s_branch L_fin")
    a("L_wo:")
    a(f"""
    s_lshl_b32 s32, s28, 4
    s_lshl_b32 s33, s31, 2
    s_add_u32 s33, s33, s32              ; 16j + 4c
    s_mul_i32 s33, s33, {OPSTRIDE}
    s_mul_i32 s32, s32, {OPSTRIDE}
    """)
    wsbase(g, 48, 33, W_OP)
    wsbase(g, 50, 32, W_OP + 1024)
    a(f"""
    s_lshl_b32 s33, s31, 2
    v_add_u32 v30, s33, v1
    v_and_b32 v30, 15, v30
    v_mul_u32_u24 v30, {OPSTRIDE}, v30
    """)
    def issue_a():
        for i in range(4):
            a(f"global_load_dwordx4 v[{32+4*i}:{35+4*i}], v10, s[48:49] offset:{i*OPSTRIDE} sc1")
        a(f"global_load_dwordx4 v[48:51], v30, s[50:51] sc1")
    poll(g, issue_a, [32, 36, 40, 44, 48], 31)
    g.stamp(9)
    for b in (32, 36, 40, 44, 48): unmask(g, b)
    a(f"""
    v_cmp_gt_u32 vcc, 32, v1
    s_nop 1
    v_cndmask_b32 v52, v50, v48, vcc     ; m
    v_cndmask_b32 v53, v51, v49, vcc     ; l
    v_mov_b32 v54, v52
    """)
    rowsum16(g, [54], op="v_max_f32")
    a(f"""
    v_sub_f32 v52, v52, v54
    v_exp_f32 v52, v52                   ; f = 2^(m-M)
    s_nop 0
    v_mul_f32 v53, v53, v52
    """)
    rowsum16(g, [53])
    a(f"""
    v_rcp_f32 v53, v53
    s_nop 0
    v_mul_f32 v52, v52, v53              ; f/L
    s_nop 1
    """)
    for i in range(4):
        a(f"v_mov_b32_dpp v{56+i}, v52 row_newbcast:{i} row_mask:0xf bank_mask:0xf")
    for e in range(4):
        a(f"v_mul_f32 v{60+e}, v{32+e}, v56")
        for i in range(1, 4):
            a(f"v_fmac_f32 v{60+e}, v{32+4*i+e}, v{56+i}")
    a(f"""
    s_lshl_b32 s33, s31, 10
    s_add_u32 s33, s33, {LOX}
    v_add_u32 v30, s33, v10
    ds_write_b128 v30, v[60:63]
    s_waitcnt lgkmcnt(0)
    s_barrier
    v_add_u32 v30, {LOX}, v10
    ds_read_b128 v[32:35], v30
    ds_read_b128 v[36:39], v30 offset:1024
    ds_read_b128 v[40:43], v30 offset:2048
    ds_read_b128 v[44:47], v30 offset:3072
    v_lshrrev_b32 v31, 3, v1
    v_lshlrev_b32 v31, 6, v31
    v_lshl_add_u32 v31, v9, 4, v31
    v_and_b32 v48, 1, v8
    v_lshl_add_u32 v31, v48, 3, v31
    v_add_u32 v48, {LOB}, v31
    s_waitcnt lgkmcnt(0)
    """)
    for e in range(4):
        a(f"v_add_f32 v{32+e}, v{32+e}, v{36+e}\nv_add_f32 v{40+e}, v{40+e}, v{44+e}\nv_add_f32 v{32+e}, v{32+e}, v{40+e}")
    a(f"""
    v_cvt_pk_bf16_f32 v32, v32, v33
    v_cvt_pk_bf16_f32 v33, v34, v35
    ds_write_b64 v48, v[32:33]
    v_add_u32 v49, {LOB}, v29            ; LOB + g*16
    s_waitcnt lgkmcnt(0)
    """)
    for st in range(8):
        a(f"ds_read_b128 v[{64+4*st}:{67+4*st}], v49 offset:{st*64}")
    a(f"""
    v_lshl_add_u32 v50, v6, 2, v8
    v_mul_u32_u24 v50, 192, v50
    v_and_b32 v51, 1, v9
    v_lshl_add_u32 v50, v51, 3, v50
    v_and_b32 v51, 1, v6
    v_lshlrev_b32 v51, 1, v51            ; (g&1)<<1
    v_lshrrev_b32 v52, 1, v9             ; c'>>1
    """)
    def wo_tile(tsreg, dreg):
        a(f"""
        s_lshl_b32 s33, s{tsreg}, 1
        v_add_u32 v53, s33, v52
        v_xor_b32 v53, v53, v51
        v_lshl_add_u32 v53, v53, 4, v50
        v_add_u32 v54, {LSP}, v53
        """)
        for st in range(8):
            for hf in range(2):
                b = 96 + st*4 + hf*2
                if st < 3: a(f"ds_read_b64_tr_b16 v[{b}:{b+1}], v54 offset:{st*6144 + hf*3072}")
                else:      a(f"ds_read_b64_tr_b16 v[{b}:{b+1}], v53 offset:{LK + (st-3)*6144 + hf*3072}")
        a("s_waitcnt lgkmcnt(0)")
        for st in range(8):
            c = "0" if st == 0 else f"v[{dreg}:{dreg+3}]"
            a(f"v_mfma_f32_16x16x32_bf16 v[{dreg}:{dreg+3}], v[{96+4*st}:{99+4*st}], v[{64+4*st}:{67+4*st}], {c}")
        a(f"""
        s_sub_u32 s32, s29, 9
        s_mul_i32 s32, s32, 24
        s_lshl_b32 s33, s{tsreg}, 2
        s_add_u32 s32, s32, s33
        s_lshl_b32 s32, s32, 8
        s_lshl_b32 s33, s28, 4
        s_add_u32 s32, s32, s33
        """)
        wsbase(g, 48, 32, W_HP)
        a("v_lshlrev_b32 v55, 8, v6")
        g.nop(8)
        tagins(g, dreg)
        a(f"""
        s_mov_b64 exec, s[40:41]
        global_store_dwordx4 v55, v[{dreg}:{dreg+3}], s[48:49] sc1
        s_mov_b64 exec, -1
        """)
    a("s_mov_b32 s34, s31")
    wo_tile(34, 128)
    a("s_cmp_lt_u32 s31, 2\ns_cbranch_scc0 L_wo_done\ns_add_u32 s34, s31, 4")
    wo_tile(34, 132)
    a("L_wo_done:")
    g.stamp(10)
    a(f"""
    s_cmp_eq_u32 s31, 0
    s_cbranch_scc0 L_fin
    s_mul_i32 s34, s28, 6
    s_add_u32 s34, s34, s29
    s_sub_u32 s34, s34, 9                ; idx
    s_cmp_lt_u32 s34, 36
    s_cbranch_scc0 L_fin
    v_lshrrev_b32 v30, 2, v1
    v_mul_u32_u24 v30, 2304, v30
    v_lshl_add_u32 v30, v9, 4, v30
    s_lshl_b32 s32, s34, 6               ; idx*64
    """)
    wsbase(g, 48, 32, W_FP)
    wsbase(g, 50, 32, W_H)
    a("v_lshlrev_b32 v31, 4, v9           ; (lane&3)*16")
    for i in range(1, 9):
        a(f"v_add_u32 v{112+i}, {i*16*2304}, v30")
    def issue_h():
        a(f"global_load_dwordx4 v[68:71], v31, s[50:51] sc1")
    poll(g, issue_h, [68], 29)
    def issue_c():
        a(f"global_load_dwordx4 v[32:35], v30, s[48:49] sc1")
        for i in range(1, 9):
            a(f"global_load_dwordx4 v[{32+4*i}:{35+4*i}], v{112+i}, s[48:49] sc1")
    poll(g, issue_c, [32+4*i for i in range(9)], 29)
    g.stamp(11)
    for i in range(9): unmask(g, 32+4*i)
    unmask(g, 68)
    for e in range(4):
        for i in range(1, 9):
            a(f"v_add_f32 v{32+e}, v{32+e}, v{32+4*i+e}")
    for sh in (4, 8):
        g.nop(2)
        for e in range(4):
            a(f"v_add_f32_dpp v{32+e}, v{32+e}, v{32+e} row_ror:{sh} row_mask:0xf bank_mask:0xf")
    crossrows(g, [32, 33, 34, 35], 36)
    a(f"""
    v_cvt_pk_bf16_f32 v36, v32, v33
    v_cvt_pk_bf16_f32 v37, v34, v35
    v_lshlrev_b32 v32, 16, v36
    v_and_b32 v33, 0xffff0000, v36
    v_lshlrev_b32 v34, 16, v37
    v_and_b32 v35, 0xffff0000, v37
    v_add_f32 v32, v32, v68
    v_add_f32 v33, v33, v69
    v_add_f32 v34, v34, v70
    v_add_f32 v35, v35, v71
    v_cvt_pk_bf16_f32 v36, v32, v33
    v_cvt_pk_bf16_f32 v37, v34, v35
    s_lshl_b32 s32, s34, 5
    s_add_u32 s22, s22, s32
    s_addc_u32 s23, s23, 0
    v_lshlrev_b32 v38, 3, v1
    s_mov_b64 exec, 15
    global_store_dwordx2 v38, v[36:37], s[22:23]
    s_mov_b64 exec, -1
    s_cmp_eq_u32 s34, 0
    s_cbranch_scc0 L_noep
    v_mov_b32 v39, s56
    s_mov_b64 exec, 1
    global_store_dword v11, v39, s[26:27] sc1
    s_mov_b64 exec, -1
    L_noep:
    """)
    g.stamp(12)
    a("s_branch L_fin")
    a("L_ffn:")
    a("s_cmp_eq_u32 s31, 0\ns_cbranch_scc0 L_ffn_bar")
    wsbase(g, 48, None, W_H)
    a("v_lshlrev_b32 v31, 4, v7           ; (lane&15)*16")
    def issue_hh():
        a(f"global_load_dwordx4 v[32:35], v10, s[48:49] sc1")
        a(f"global_load_dwordx4 v[36:39], v10, s[48:49] offset:1024 sc1")
        a(f"global_load_dwordx4 v[40:43], v31, s[48:49] offset:2048 sc1")
    poll(g, issue_hh, [32, 36, 40], 30)
    g.stamp(9)
    for b in (32, 36, 40): unmask(g, b)
    for r in range(40, 44):
        a(f"v_cndmask_b32 v{r}, 0, v{r}, s[46:47]")
    layernorm(g, list(range(32, 44)), {r: "s[46:47]" for r in range(40, 44)}, 26)
    for i in range(6):
        a(f"v_cvt_pk_bf16_f32 v{44+i}, v{32+2*i}, v{33+2*i}")
    a(f"""
    v_lshrrev_b32 v31, 3, v1
    v_lshlrev_b32 v31, 6, v31
    v_lshl_add_u32 v31, v9, 4, v31
    v_and_b32 v30, 1, v8
    v_lshl_add_u32 v31, v30, 3, v31
    v_add_u32 v31, {LHN}, v31
    ds_write_b64 v31, v[44:45]
    ds_write_b64 v31, v[46:47] offset:512
    s_mov_b64 exec, s[46:47]
    ds_write_b64 v31, v[48:49] offset:1024
    s_mov_b64 exec, -1
    s_waitcnt lgkmcnt(0)
    L_ffn_bar:
    s_barrier
    """)
    g.stamp(10)
    a(f"v_add_u32 v30, {LHN}, v29")
    for st in range(18):
        a(f"ds_read_b128 v[{32+4*st}:{35+4*st}], v30 offset:{st*64}")
    a(f"""
    v_lshl_add_u32 v104, v6, 2, v8
    v_lshlrev_b32 v104, 6, v104
    v_and_b32 v105, 1, v9
    v_lshl_add_u32 v104, v105, 3, v104
    v_and_b32 v105, 1, v6
    v_lshlrev_b32 v105, 1, v105
    v_lshrrev_b32 v106, 1, v9
    s_and_b32 s32, s31, 1
    s_lshl_b32 s32, s32, 1
    v_add_u32 v106, s32, v106
    v_xor_b32 v106, v106, v105
    v_lshl_add_u32 v104, v106, 4, v104
    s_mov_b32 s34, {LK + 18432}
    s_mov_b32 s35, {LK + 36864}
    s_cmp_lt_u32 s31, 2
    s_cselect_b32 s32, {LSP}, s34
    s_cselect_b32 s33, {LK}, s35
    v_add_u32 v105, s32, v104            ; blocks 0..17
    v_add_u32 v106, s33, v104            ; blocks 18..35
    """)
    for half in range(2):
        for s9 in range(9):
            for hf in range(2):
                blk = 2*s9 + hf
                b = 112 + s9*4 + hf*2
                a(f"ds_read_b64_tr_b16 v[{b}:{b+1}], v{105+half} offset:{blk*1024}")
        a("s_waitcnt lgkmcnt(0)")
        for s9 in range(9):
            st = half*9 + s9
            c = "0" if st == 0 else "v[108:111]"
            a(f"v_mfma_f32_16x16x32_bf16 v[108:111], v[{112+4*s9}:{115+4*s9}], v[{32+4*st}:{35+4*st}], {c}")
    a(f"""
    s_lshl_b32 s32, s31, 6
    s_add_u32 s32, s32, {LGU}
    v_add_u32 v30, s32, v29
    """)
    g.nop(8)
    a(f"""
    s_mov_b64 exec, s[40:41]
    ds_write_b128 v30, v[108:111]
    s_mov_b64 exec, -1
    s_waitcnt lgkmcnt(0)
    s_barrier
    v_add_u32 v30, {LGU}, v29
    ds_read_b128 v[32:35], v30
    ds_read_b128 v[36:39], v30 offset:64
    ds_read_b128 v[40:43], v30 offset:128
    ds_read_b128 v[44:47], v30 offset:192
    v_add_u32 v31, {LV}, v25
    """)
    for m in range(9):
        a(f"ds_read_b64_tr_b16 v[{64+4*m}:{65+4*m}], v31 offset:{m*4096}")
        a(f"ds_read_b64_tr_b16 v[{66+4*m}:{67+4*m}], v31 offset:{m*4096+2048}")
    a("s_waitcnt lgkmcnt(0)")
    for i in range(0, 8, 2):
        a(f"""
        v_cvt_pk_bf16_f32 v48, v{32+i}, v{33+i}
        v_cvt_pk_bf16_f32 v49, v{40+i}, v{41+i}
        v_lshlrev_b32 v50, 16, v48
        v_and_b32 v51, 0xffff0000, v48
        v_lshlrev_b32 v52, 16, v49
        v_and_b32 v53, 0xffff0000, v49
        v_mul_f32 v50, v50, v52
        v_mul_f32 v51, v51, v53
        v_cvt_pk_bf16_f32 v{56+i//2}, v50, v51
        """)
    g.nop(2)
    for m in range(9):
        a(f"v_mfma_f32_16x16x32_bf16 v[{112+4*m}:{115+4*m}], v[{64+4*m}:{67+4*m}], v[56:59], 0")
    a(f"""
    s_mul_i32 s32, s28, 9
    s_add_u32 s32, s32, s29
    s_mul_i32 s32, s32, 2304
    s_lshl_b32 s33, s31, 6
    s_add_u32 s32, s32, s33
    """)
    wsbase(g, 48, 32, W_FP)
    g.nop(8)
    for m in range(9): tagins(g, 112+4*m)
    a("s_mov_b64 exec, s[40:41]")
    for m in range(9):
        a(f"global_store_dwordx4 v29, v[{112+4*m}:{115+4*m}], s[48:49] offset:{m*256} sc1")
    a("s_mov_b64 exec, -1")
    g.stamp(11)
    a("L_fin:")
    if g.ts:
        a(f"""
        s_waitcnt lgkmcnt(0)
        s_lshl_b32 s32, s2, 2
        s_add_u32 s32, s32, s31
        s_lshl_b32 s32, s32, 7
        """)
        wsbase(g, 48, 32, W_TS)
        a("s_mov_b64 exec, 1")
        for i in range(14):
            a(f"v_mov_b32 v4, s{60+2*i}\nglobal_store_dword v11, v4, s[48:49] offset:{4*i}")
        a("s_mov_b64 exec, -1")

if __name__ == "__main__":
    import build
    ts = "--ts" in sys.argv
    out = [x for x in sys.argv[1:] if not x.startswith("--")][0]
    body = gen(ts=ts)
    open(out, "w").write(single(body, 256, 512, LDS_BYTES, 160, sgpr=96))
    print(build.build(out))
```

```python
import sys
from asmlib import *

NCW = 8
LK = 0; LV = 65536; LSP = 131072
LXN = 149504; LQ = 150784; LP = 151296; LMAX = 152320; LCNT = 152384
LHN = 152640; LGU = 153920
LDX = 154432
LOX = LV; LOB = LV + 8192
LHX = LV
LDS_BYTES = 163840
C_WQ, C_SPFREE, C_Q, C_K0, C_MAX, C_KFREE, C_P, C_V0, C_HN = 0, 1, 2, 3, 7, 8, 9, 10, 14
W_EPOCH = 0; W_QP = 0x1000; W_OP = 0x20000; W_HP = 0x80000; W_H = 0x90000; W_FP = 0xA0000
LOCAL = 0x100000
W_TS = 0x200000
OPSTRIDE = 1280
LOG2E = 0x3fb8aa3b
SCALE = 0x3db504f3
EPS = 0x3727c5ac
INV576 = 0x3ae38e39
S_X, S_T, S_J, S_S, S_W, S_C = 28, 34, 29, 35, 30, 31

class G:
    def __init__(self, **kw):
        self.a = Asm()
        self.ts = kw.get("ts", False); self.win = kw.get("win", 5); self.win2 = kw.get("win2", 9); self.rotmul = kw.get("rot", 13)
        self.spin_cap = 200000; self.poll_cap = 20000; self.local_cap = kw.get("lcap", 40)
        self.opt = kw
    def __call__(self, s): self.a(s)
    def nop(self, n):
        while n > 0:
            k = min(n, 16); self.a(f"s_nop {k-1}"); n -= k
    def stamp(self, i):
        if self.ts: self.a(f"s_memrealtime s[{60+2*i}:{61+2*i}]")
    def signal(self, cid):
        self.a(f"""
        s_mov_b64 exec, 1
        ds_add_u32 v2, v3 offset:{4*cid}
        s_mov_b64 exec, -1
        """)
    def waitcnt_lds(self, cid, val, addr="v2", sleep=1):
        L = self.a.uniq("Lsp"); Lx = self.a.uniq("Lspx")
        off = f" offset:{4*cid}" if cid is not None else ""
        self.a(f"""
        {L}:
        ds_read_b32 v4, {addr}{off}
        s_waitcnt lgkmcnt(0)
        v_readfirstlane_b32 s59, v4
        s_cmp_ge_u32 s59, {val}
        s_cbranch_scc1 {Lx}
        s_cmp_eq_u32 s57, 0
        s_cbranch_scc1 {Lx}
        s_sub_u32 s57, s57, 1
        {"s_sleep "+str(sleep) if sleep else ""}
        s_branch {L}
        {Lx}:
        """)

def srd(g, r, plo, size):
    g(f"s_mov_b32 s{r}, s{plo}\ns_mov_b32 s{r+1}, s{plo+1}\ns_mov_b32 s{r+2}, {size}\ns_mov_b32 s{r+3}, 0x20000")

def wsbase(g, dst, sreg=None, const=0):
    if sreg is not None:
        g(f"s_add_u32 s{dst}, s26, s{sreg}\ns_addc_u32 s{dst+1}, s27, 0")
        if const: g(f"s_add_u32 s{dst}, s{dst}, {const}\ns_addc_u32 s{dst+1}, s{dst+1}, 0")
    else:
        g(f"s_add_u32 s{dst}, s26, {const}\ns_addc_u32 s{dst+1}, s27, 0")

LSTAMP = {C_WQ: 2, C_K0: 3, C_K0+1: 4, C_K0+2: 5, C_K0+3: 6, C_V0: 7, C_V0+1: 8, C_V0+2: 9, C_V0+3: 10}
def loader_exit(g):
    a = g.a
    a("s_waitcnt vmcnt(0) lgkmcnt(0)")
    if g.ts:
        g.stamp(13)
        a(f"""
        s_waitcnt lgkmcnt(0)
        s_lshl_b32 s32, s2, 2
        s_add_u32 s32, s32, s30
        s_lshl_b32 s32, s32, 7
        v_mov_b32 v11, 0
        """)
        wsbase(g, 48, 32, W_TS + 0x40000)
        a("s_mov_b64 exec, 1")
        for i in range(14):
            a(f"v_mov_b32 v4, s{60+2*i}\nglobal_store_dword v11, v4, s[48:49] offset:{4*i}")
        a("s_waitcnt vmcnt(0)")
    a("s_endpgm")

class LoaderSeq:
    def __init__(self, g):
        self.g = g; self.n = 0; self.pending = []; self.win = g.win
    def load(self, vo, srdr, soff_code, m0_code):
        g = self.g
        waited = None
        while self.pending and self.n - 1 - self.pending[0][0] >= self.win - 1:
            idx, cid = self.pending.pop(0)
            k = self.n - 1 - idx
            g(f"s_waitcnt vmcnt({k})"); waited = k
            g.signal(cid); g.stamp(LSTAMP[cid])
        if self.win and self.n >= self.win and (waited is None or waited > self.win - 1):
            g(f"s_waitcnt vmcnt({self.win-1})")
        g(soff_code); g(m0_code); g.nop(1)
        g(f"buffer_load_dwordx4 v{vo}, s[{srdr}:{srdr+3}], s33 offen nt lds")
        self.n += 1
    def sig(self, cid): self.pending.append((self.n-1, cid))
    def flush(self):
        g = self.g
        for idx, cid in self.pending:
            g(f"s_waitcnt vmcnt({self.n-1-idx})")
            g.signal(cid); g.stamp(LSTAMP[cid])
        self.pending = []
    def fork(self):
        c = LoaderSeq(self.g); c.n = self.n; c.pending = list(self.pending); return c

def prologue(g):
    a = g.a
    g.stamp(0)
    a(f"""
    s_cmp_ge_u32 s2, 256
    s_cbranch_scc1 L_end
    s_load_dwordx16 s[4:19], s[0:1], 0
    s_load_dwordx8 s[20:27], s[0:1], 64
    v_and_b32 v1, 63, v0                 ; lane
    v_lshrrev_b32 v4, 6, v0
    v_mov_b32 v2, {LCNT}
    v_readfirstlane_b32 s30, v4
    v_mov_b32 v3, 1
    s_and_b32 s28, s2, 7                 ; x
    s_lshr_b32 s34, s2, 3                ; t
    s_lshl_b32 s29, s28, 1
    s_and_b32 s32, s34, 1
    s_add_u32 s29, s29, s32              ; j = 2x + (t&1)
    s_lshr_b32 s35, s2, 4                ; s = t>>1
    s_mov_b32 s57, {g.spin_cap}
    s_mov_b32 s58, {g.poll_cap}
    v_lshl_add_u32 v4, v1, 2, v2
    v_mov_b32 v5, 0
    ds_write_b32 v4, v5
    s_waitcnt lgkmcnt(0)
    s_barrier
    """)
    g.stamp(1)
    a(f"""
    s_cmp_ge_u32 s30, 4
    s_cbranch_scc1 L_compute
    """)

def loader(g):
    a = g.a
    a(f"""
    s_lshl_b32 s32, s29, 24              ; head*16MiB
    s_add_u32 s32, s32, {(65536-4096)*256}
    s_lshl_b32 s33, s35, 16              ; split*64KiB
    s_add_u32 s32, s32, s33
    s_add_u32 s36, s6, s32
    s_addc_u32 s37, s7, 0
    s_mov_b32 s38, 65536
    s_mov_b32 s39, 0x20000
    s_add_u32 s40, s8, s32
    s_addc_u32 s41, s9, 0
    s_mov_b32 s42, 65536
    s_mov_b32 s43, 0x20000
    """)
    srd(g, 44, 10, 576*4096*2)
    a(f"""
    v_lshrrev_b32 v6, 3, v1
    v_lshlrev_b32 v10, 13, v6            ; row*8192
    v_lshrrev_b32 v7, 4, v1
    v_and_b32 v7, 3, v7
    v_lshlrev_b32 v7, 1, v7
    v_and_b32 v8, 7, v1
    v_xor_b32 v8, v8, v7
    v_lshlrev_b32 v8, 4, v8
    v_add_u32 v10, v10, v8
    s_lshr_b32 s32, s35, 2
    s_mul_i32 s32, s32, {144*8192}
    s_lshl_b32 s33, s29, 9
    s_add_u32 s32, s32, s33
    s_and_b32 s33, s35, 3
    s_lshl_b32 s33, s33, 7
    s_add_u32 s48, s32, s33
    s_lshl_b32 s33, s30, 16              ; w*8*8192
    s_add_u32 s48, s48, s33
    s_lshl_b32 s49, s30, 10              ; w*1024
    """)
    L = LoaderSeq(g)
    for m in range(5):
        lab = None
        if m == 4:
            lab = a.uniq("Lwq"); a(f"s_cmp_lt_u32 s30, 2\ns_cbranch_scc0 {lab}")
        L.load(10, 44, f"s_add_u32 s33, s48, {m*4*8*8192}", f"s_add_u32 m0, s49, {LSP + m*4096}")
        if lab: a.label(lab)
    L.sig(C_WQ)
    a(f"""
    v_lshrrev_b32 v6, 4, v1
    v_and_b32 v7, 15, v1
    s_lshl_b32 s32, s30, 2
    v_add_u32 v9, s32, v6
    v_xor_b32 v9, v9, v7
    v_lshlrev_b32 v9, 4, v9
    v_lshl_add_u32 v11, v6, 8, v9        ; v11 = K voffset
    s_and_b32 s32, s30, 1
    s_lshl_b32 s32, s32, 2
    v_add_u32 v9, s32, v6
    v_lshlrev_b32 v9, 1, v9
    v_xor_b32 v9, v9, v7
    v_lshlrev_b32 v9, 4, v9
    v_lshl_add_u32 v12, v6, 8, v9        ; v12 = V voffset
    s_mul_i32 s50, s2, {g.rotmul}
    s_add_u32 s50, s50, s30              ; rot + w
    """)
    for (vo, sr, base, c0) in ((11, 36, LK, C_K0), (12, 40, LV, C_V0)):
        for i in range(16):
            L.load(vo, sr, f"s_add_u32 s33, s50, {4*i}\ns_and_b32 s33, s33, 63\ns_lshl_b32 s33, s33, 10",
                   f"s_add_u32 m0, s49, {base + i*4096}")
            if i % 4 == 3: L.sig(c0 + i//4)
    a(f"""
    s_cmp_lt_u32 s34, 18
    s_cbranch_scc1 L_ld_ffn
    s_cmp_lt_u32 s34, 27
    s_cbranch_scc1 L_ld_wo
    """)
    Ls = L.fork(); Ls.flush()
    loader_exit(g)
    a("L_ld_wo:")
    Lw = L.fork()
    srd(g, 44, 12, 4096*576*2)
    a(f"""
    v_lshrrev_b32 v6, 3, v1
    v_mul_u32_u24 v7, 1152, v6
    v_add_u32 v14, v7, v8
    s_mul_i32 s48, s28, {512*1152}
    s_sub_u32 s32, s34, 18
    s_lshl_b32 s32, s32, 7
    s_add_u32 s48, s48, s32
    s_mul_i32 s32, s30, {8*1152}
    s_add_u32 s48, s48, s32
    s_mov_b32 s52, {LK - 2*1024}
    s_cmp_lt_u32 s30, 2
    s_cselect_b32 s52, {LSP + 16*1024}, s52
    """)
    g.waitcnt_lds(C_SPFREE, 4)
    for m in range(16):
        if m == 1: Lw.win = g.win2
        if m == 4:
            g.waitcnt_lds(C_KFREE, NCW); g.stamp(12)
        if m < 4: m0 = f"s_add_u32 m0, s49, {LSP + m*4096}"
        elif m == 4: m0 = f"s_add_u32 m0, s49, s52"
        else: m0 = f"s_add_u32 m0, s49, {LK + (4*m-18)*1024}"
        Lw.load(14, 44, f"s_add_u32 s33, s48, {m*4*8*1152}", m0)
    Lw.flush()
    loader_exit(g)
    a("L_ld_ffn:")
    Lf = L.fork()
    srd(g, 36, 16, 576*4608*2)
    srd(g, 44, 18, 576*4608*2)
    a(f"""
    v_lshrrev_b32 v6, 2, v1
    v_mul_u32_u24 v7, 9216, v6
    v_lshrrev_b32 v9, 4, v1
    v_and_b32 v9, 1, v9
    v_lshlrev_b32 v9, 1, v9
    v_and_b32 v13, 3, v1
    v_xor_b32 v9, v9, v13
    v_lshlrev_b32 v9, 4, v9
    v_add_u32 v14, v7, v9
    s_mul_i32 s51, s28, 18
    s_add_u32 s51, s51, s34              ; f = 18x + t
    s_lshl_b32 s48, s51, 6               ; f*64
    s_mul_i32 s32, s30, {16*9216}
    s_add_u32 s48, s48, s32
    s_mov_b32 s53, {LK - 2*1024}
    s_cmp_lt_u32 s30, 2
    s_cselect_b32 s53, {LSP + 16*1024}, s53
    """)
    g.waitcnt_lds(C_SPFREE, 4)
    g.stamp(11)
    for m in range(9):
        if m == 4:
            g.waitcnt_lds(C_KFREE, NCW); g.stamp(12)
        if m < 4: m0 = f"s_add_u32 m0, s49, {LSP + m*4096}"
        elif m == 4: m0 = f"s_add_u32 m0, s49, s53"
        else: m0 = f"s_add_u32 m0, s49, {LK + (4*m-18)*1024}"
        Lf.load(14, 36, f"s_add_u32 s33, s48, {m*4*16*9216}", m0)
    for m in range(9):
        Lf.load(14, 44, f"s_add_u32 s33, s48, {m*4*16*9216}", f"s_add_u32 m0, s49, {LK + 18432 + m*4096}")
    Lf.flush()
    loader_exit(g)

def rowred(g, regs, shifts=(8, 4, 2, 1), ops=None):
    for sh in shifts:
        if len(regs) < 3: g.nop(2 if len(regs) == 1 else 1)
        else: g.nop(1)
        for r, op in regs:
            g(f"{op}_dpp v{r}, v{r}, v{r} row_ror:{sh} row_mask:0xf bank_mask:0xf")
def crossrows(g, regs, tmps):
    for sw in ("v_permlane16_swap_b32", "v_permlane32_swap_b32"):
        for (r, op), t in zip(regs, tmps): g(f"v_mov_b32 v{t}, v{r}")
        g.nop(2 if len(regs) == 1 else max(0, 3 - len(regs)) + 1)
        for (r, op), t in zip(regs, tmps): g(f"{sw} v{t}, v{r}")
        g.nop(1)
        for (r, op), t in zip(regs, tmps): g(f"{op} v{r}, v{r}, v{t}")
def bf16r(g, dst, src, tmp):
    g(f"v_cvt_pk_bf16_f32 v{tmp}, v{src}, v{src}\nv_and_b32 v{dst}, 0xffff0000, v{tmp}")

def ln_stats(g, vals, masks, t):
    t0, t1, t2, t3 = t, t+1, t+2, t+3
    a = g
    a(f"v_add_f32 v{t0}, v{vals[0]}, v{vals[1]}")
    for r in vals[2:]: a(f"v_add_f32 v{t0}, v{t0}, v{r}")
    rowred(g, [(t0, "v_add_f32")]); crossrows(g, [(t0, "v_add_f32")], [t1])
    a(f"v_mul_f32 v{t0}, {INV576:#x}, v{t0}")
    a(f"v_mov_b32 v{t2}, 0")
    for r in vals:
        a(f"v_sub_f32 v{t1}, v{r}, v{t0}")
        if r in masks: a(f"v_cndmask_b32 v{t1}, 0, v{t1}, {masks[r]}")
        a(f"v_fmac_f32 v{t2}, v{t1}, v{t1}")
    rowred(g, [(t2, "v_add_f32")]); crossrows(g, [(t2, "v_add_f32")], [t1])
    a(f"v_mul_f32 v{t2}, {INV576:#x}, v{t2}")
    bf16r(g, t0, t0, t1)
    bf16r(g, t2, t2, t1)
    a(f"v_add_f32 v{t2}, {EPS:#x}, v{t2}")
    bf16r(g, t2, t2, t1)
    a(f"v_sqrt_f32 v{t2}, v{t2}")
    g.nop(1)
    bf16r(g, t2, t2, t1)
    a(f"v_rcp_f32 v{t2}, v{t2}")
    g.nop(1)
def ln_apply(g, vals, t, outs):
    t0, t1, t2 = t, t+1, t+2
    for i in range(0, len(vals), 2):
        r0, r1 = vals[i], vals[i+1]
        g(f"v_sub_f32 v{r0}, v{r0}, v{t0}\nv_sub_f32 v{r1}, v{r1}, v{t0}")
        g(f"v_cvt_pk_bf16_f32 v{t1}, v{r0}, v{r1}")
        g(f"v_lshlrev_b32 v{r0}, 16, v{t1}\nv_and_b32 v{r1}, 0xffff0000, v{t1}")
        g(f"v_mul_f32 v{r0}, v{r0}, v{t2}\nv_mul_f32 v{r1}, v{r1}, v{t2}")
        g(f"v_cvt_pk_bf16_f32 v{outs[i//2]}, v{r0}, v{r1}")

def poll(g, issue, words, acc, base=None, sleep=0):
    L = g.a.uniq("Lpl"); Lx = g.a.uniq("Lplx"); Lc = g.a.uniq("Lplc")
    if base: g(f"s_mov_b32 s56, {g.local_cap}")
    g.a.label(L)
    issue()
    g("s_waitcnt vmcnt(0)")
    first = True
    for b in words:
        for i in range(4):
            g(f"v_xor_b32 v{b+i}, s{52+i}, v{b+i}")
        if first:
            g(f"v_or3_b32 v{acc}, v{b}, v{b+1}, v{b+2}\nv_or_b32 v{acc}, v{acc}, v{b+3}"); first = False
        else:
            g(f"v_or3_b32 v{acc}, v{acc}, v{b}, v{b+1}\nv_or3_b32 v{acc}, v{acc}, v{b+2}, v{b+3}")
    g(f"""
    v_and_b32 v{acc}, 0xff, v{acc}
    v_cmp_ne_u32 vcc, 0, v{acc}
    s_cbranch_vccz {Lx}
    s_cmp_eq_u32 s58, 0
    s_cbranch_scc1 {Lx}
    s_sub_u32 s58, s58, 1
    """)
    if sleep: g(f"s_sleep {sleep}")
    if base:
        g(f"""
        s_cmp_eq_u32 s56, 0
        s_cbranch_scc1 {L}
        s_sub_u32 s56, s56, 1
        s_cmp_eq_u32 s56, 0
        s_cbranch_scc0 {L}
        """)
        for b in base:
            g(f"s_sub_u32 s{b}, s{b}, {LOCAL}\ns_subb_u32 s{b+1}, s{b+1}, 0")
    g(f"s_branch {L}")
    g.a.label(Lx)
def tagins(g, base, dst=None):
    if dst is None: dst = base
    for i in range(4):
        g(f"v_bfi_b32 v{dst+i}, v5, s{52+i}, v{base+i}")
def dual_store(g, voff, data, sb, off=0):
    o = f" offset:{off}" if off else ""
    g(f"global_store_dwordx4 v{voff}, v[{data}:{data+3}], s[{sb+2}:{sb+3}]{o}")
    g(f"global_store_dwordx4 v{voff}, v[{data}:{data+3}], s[{sb}:{sb+1}]{o} sc1")
def dual_base(g, sb, sreg, const):
    wsbase(g, sb, sreg, const)
    g(f"s_add_u32 s{sb+2}, s{sb}, {LOCAL}\ns_addc_u32 s{sb+3}, s{sb+1}, 0")

def dump_ts(g):
    a = g.a
    if g.ts:
        a(f"""
        s_waitcnt lgkmcnt(0)
        s_lshl_b32 s32, s2, 3
        s_add_u32 s32, s32, s31
        s_lshl_b32 s32, s32, 7
        """)
        wsbase(g, 48, 32, W_TS + 0x80000)
        a("s_mov_b64 exec, 1")
        for i in range(18):
            a(f"v_mov_b32 v4, s{60+2*i}\nglobal_store_dword v11, v4, s[48:49] offset:{4*i}")
        a("s_mov_b64 exec, -1")

def compute(g):
    a = g.a
    a(f"""
    s_setprio 3
    s_sub_u32 s31, s30, 4                ; c (0..7)
    v_lshlrev_b32 v10, 4, v1
    v_mov_b32 v11, 0
    """)
    srd(g, 36, 4, 1152)
    a(f"""
    buffer_load_dwordx4 v[16:19], v10, s[36:39], 0 offen
    buffer_load_dwordx4 v[20:23], v10, s[36:39], 0 offen offset:1024
    global_load_dword v24, v11, s[26:27] sc1
    v_mov_b32 v5, 0xff
    v_lshrrev_b32 v6, 4, v1
    v_and_b32 v7, 15, v1
    v_lshrrev_b32 v8, 2, v7
    v_and_b32 v9, 3, v1
    v_lshlrev_b32 v29, 4, v6             ; g*16
    s_mov_b32 s40, 0x00010001
    s_mov_b32 s41, 0x00010001            ; s[40:41] lanes n==0
    s_mov_b32 s42, 0x00030003
    s_mov_b32 s43, 0x00030003            ; s[42:43] lanes n<2
    s_mov_b32 s44, 0xff
    s_mov_b32 s45, 0                     ; s[44:45] lanes < 8
    s_mov_b32 s46, 0xffff
    s_mov_b32 s47, 0                     ; s[46:47] lanes < 16
    v_lshl_add_u32 v13, v6, 2, v8        ; 4g+r'
    v_lshrrev_b32 v14, 1, v13
    v_and_b32 v14, 3, v14
    v_lshlrev_b32 v14, 1, v14
    v_lshrrev_b32 v15, 1, v9
    s_and_b32 s32, s31, 3
    s_lshl_b32 s32, s32, 1
    v_add_u32 v25, s32, v15
    v_xor_b32 v25, v25, v14
    v_lshlrev_b32 v25, 4, v25
    v_lshl_add_u32 v25, v13, 7, v25
    v_and_b32 v26, 1, v9
    v_lshl_add_u32 v25, v26, 3, v25
    s_waitcnt vmcnt(0)
    v_readfirstlane_b32 s32, v24
    s_mul_i32 s32, s32, 1664525
    s_add_u32 s32, s32, 1013904223
    s_or_b32 s51, s32, 0x01010101
    s_and_b32 s52, s51, 0xff
    s_bfe_u32 s53, s51, 0x80008
    s_bfe_u32 s54, s51, 0x80010
    s_lshr_b32 s55, s51, 24
    """)
    g.stamp(2)
    a("s_cmp_ge_u32 s31, 4\ns_cbranch_scc1 L_qwait")
    for i in range(8):
        a(f"v_lshlrev_b32 v{32+2*i}, 16, v{16+i}\nv_and_b32 v{33+2*i}, 0xffff0000, v{16+i}")
    vals = list(range(32, 48))
    ln_stats(g, vals, {r: "s[44:45]" for r in range(40, 48)}, 48)
    ln_apply(g, vals, 48, list(range(16, 24)))
    a(f"""
    v_add_u32 v12, {LXN}, v10
    ds_write_b128 v12, v[16:19]
    s_mov_b64 exec, s[44:45]
    ds_write_b128 v12, v[20:23] offset:1024
    s_mov_b64 exec, -1
    v_add_u32 v27, {LSP}, v25
    s_lshr_b32 s32, s35, 2
    s_mul_i32 s32, s32, 288
    s_add_u32 s32, s32, {LXN}
    v_lshlrev_b32 v28, 3, v6
    v_add_u32 v28, s32, v28
    s_lshl_b32 s32, s29, 12
    s_lshr_b32 s33, s35, 2
    s_lshl_b32 s33, s33, 10
    s_add_u32 s32, s32, s33
    s_and_b32 s33, s35, 3
    s_lshl_b32 s33, s33, 8
    s_add_u32 s32, s32, s33
    s_lshl_b32 s33, s31, 6
    s_add_u32 s32, s32, s33
    """)
    dual_base(g, 48, 32, W_QP)
    a("s_waitcnt lgkmcnt(0)")
    g.waitcnt_lds(C_WQ, 4)
    g.stamp(3)
    for st in range(9):
        a(f"ds_read_b64_tr_b16 v[{32+2*st}:{33+2*st}], v27 offset:{st*2048}")
        a(f"ds_read_b64 v[{52+2*st}:{53+2*st}], v28 offset:{st*32}")
    a("s_waitcnt lgkmcnt(0)")
    g.signal(C_SPFREE)
    for st in range(9):
        c = "0" if st == 0 else "v[72:75]"
        a(f"v_mfma_f32_16x16x16_bf16 v[72:75], v[{32+2*st}:{33+2*st}], v[{52+2*st}:{53+2*st}], {c}")
    g.nop(8)
    tagins(g, 72)
    a("s_mov_b64 exec, s[40:41]")
    dual_store(g, 29, 72, 48)
    a("s_mov_b64 exec, -1")
    g.stamp(4)
    a("s_cmp_eq_u32 s31, 0\ns_cbranch_scc0 L_qwait")
    a("s_lshl_b32 s32, s29, 12")
    wsbase(g, 48, 32, W_QP + LOCAL)
    def issue_q():
        for kb in range(4):
            a(f"global_load_dwordx4 v[{32+4*kb}:{35+4*kb}], v10, s[48:49] offset:{kb*1024} sc1")
    poll(g, issue_q, [32, 36, 40, 44], 30, base=[48])
    for i in range(4):
        a(f"v_add_f32 v{32+i}, v{32+i}, v{36+i}\nv_add_f32 v{40+i}, v{40+i}, v{44+i}\nv_add_f32 v{32+i}, v{32+i}, v{40+i}")
    a(f"""
    v_cvt_pk_bf16_f32 v32, v32, v33
    v_cvt_pk_bf16_f32 v33, v34, v35
    v_lshlrev_b32 v30, 3, v1
    v_add_u32 v30, {LQ}, v30
    ds_write_b64 v30, v[32:33]
    s_waitcnt lgkmcnt(0)
    """)
    g.signal(C_Q)
    a("L_qwait:")
    a(f"""
    s_lshl_b32 s32, s31, 13              ; 32c*256
    v_lshlrev_b32 v31, 8, v7             ; key*256
    v_add_u32 v31, s32, v31
    """)
    for st in range(4):
        a(f"v_add_u32 v{48+st}, {4*st}, v6\nv_xor_b32 v{48+st}, v{48+st}, v7\nv_lshl_add_u32 v{48+st}, v{48+st}, 4, v31")
    a(f"""
    v_and_b32 v30, 1, v7
    v_lshlrev_b32 v30, 8, v30
    v_lshl_add_u32 v30, v6, 4, v30
    v_add_u32 v30, {LQ}, v30
    s_lshr_b32 s32, s31, 1
    s_lshl_b32 s32, s32, 2
    s_add_u32 s32, s32, {LCNT + 4*C_K0}
    v_mov_b32 v52, s32
    """)
    g.waitcnt_lds(C_Q, 1)
    g.stamp(5)
    for st in range(4):
        a(f"ds_read_b128 v[{32+4*st}:{35+4*st}], v30 offset:{st*64}")
    g.waitcnt_lds(None, 4, addr="v52")
    g.stamp(6)
    for t in range(2):
        for st in range(4):
            b = 64 + (t*4+st)*4
            a(f"ds_read_b128 v[{b}:{b+3}], v{48+st} offset:{LK + t*4096}")
    a("s_waitcnt lgkmcnt(0)")
    g.signal(C_KFREE)
    for st in range(4):
        for t in range(2):
            b = 64 + (t*4+st)*4
            c = "0" if st == 0 else f"v[{128+4*t}:{131+4*t}]"
            a(f"v_mfma_f32_16x16x32_bf16 v[{128+4*t}:{131+4*t}], v[{b}:{b+3}], v[{32+4*st}:{35+4*st}], {c}")
    a(f"s_mov_b32 s32, {SCALE:#x}\ns_mov_b32 s33, {LOG2E:#x}")
    a(f"""
    v_and_b32 v55, 1, v7
    v_lshlrev_b32 v55, 5, v55
    v_add_u32 v55, {LMAX}, v55           ; LMAX + h*32
    s_lshl_b32 s59, s31, 2
    v_add_u32 v56, s59, v55
    """)
    g.nop(4)
    for i in range(0, 8, 2):
        r0, r1 = 128+i, 129+i
        a(f"""
        v_cvt_pk_bf16_f32 v53, v{r0}, v{r1}
        v_lshlrev_b32 v{r0}, 16, v53
        v_and_b32 v{r1}, 0xffff0000, v53
        v_mul_f32 v{r0}, s32, v{r0}
        v_mul_f32 v{r1}, s32, v{r1}
        v_cvt_pk_bf16_f32 v53, v{r0}, v{r1}
        v_lshlrev_b32 v{r0}, 16, v53
        v_and_b32 v{r1}, 0xffff0000, v53
        """)
    a(f"""
    v_max3_f32 v54, v128, v129, v130
    v_max3_f32 v54, v54, v131, v132
    v_max3_f32 v54, v54, v133, v134
    v_max_f32 v54, v54, v135
    """)
    crossrows(g, [(54, "v_max_f32")], [53])
    a(f"""
    s_mov_b64 exec, 3
    ds_write_b32 v56, v54
    s_mov_b64 exec, -1
    s_waitcnt lgkmcnt(0)
    """)
    g.signal(C_MAX)
    a(f"""
    v_and_b32 v56, 1, v7
    v_lshlrev_b32 v56, 6, v56
    v_lshl_add_u32 v56, v6, 4, v56
    v_add_u32 v56, {LP}, v56
    s_lshl_b32 s59, s31, 7
    v_add_u32 v57, s59, v56              ; + c*128
    """)
    g.waitcnt_lds(C_MAX, NCW)
    a(f"""
    ds_read_b128 v[60:63], v55
    ds_read_b128 v[64:67], v55 offset:16
    s_waitcnt lgkmcnt(0)
    v_max3_f32 v54, v60, v61, v62
    v_max3_f32 v54, v54, v63, v64
    v_max3_f32 v54, v54, v65, v66
    v_max_f32 v54, v54, v67
    v_mul_f32 v54, s33, v54
    v_and_b32 v54, 0xffffff00, v54
    """)
    for i in range(8):
        a(f"v_fma_f32 v{128+i}, v{128+i}, s33, -v54")
    for i in range(8):
        a(f"v_exp_f32 v{128+i}, v{128+i}")
    g.nop(1)
    for i in range(4):
        a(f"v_cvt_pk_bf16_f32 v{64+i}, v{128+2*i}, v{129+2*i}")
    a(f"""
    s_mov_b64 exec, s[42:43]
    ds_write_b128 v57, v[64:67]
    s_mov_b64 exec, -1
    s_waitcnt lgkmcnt(0)
    """)
    g.signal(C_P)
    a(f"""
    v_lshl_add_u32 v57, v6, 2, v8
    v_and_b32 v58, 7, v57
    v_lshlrev_b32 v58, 1, v58
    v_lshrrev_b32 v59, 1, v9
    s_lshl_b32 s59, s31, 1
    v_add_u32 v60, s59, v59
    v_xor_b32 v61, v60, v58
    v_lshlrev_b32 v57, 8, v57
    v_and_b32 v59, 1, v9
    v_lshl_add_u32 v57, v59, 3, v57
    v_add_u32 v57, {LV}, v57
    v_lshl_add_u32 v61, v61, 4, v57
    v_mov_b32 v96, 0x3f803f80
    v_mov_b32 v97, 0x3f803f80
    v_mov_b32 v98, 0x3f803f80
    v_mov_b32 v99, 0x3f803f80
    s_lshl_b32 s32, s29, 4
    s_add_u32 s32, s32, s35
    s_mul_i32 s32, s32, {OPSTRIDE}
    s_lshl_b32 s33, s31, 6
    s_add_u32 s33, s33, s32
    """)
    dual_base(g, 48, 33, W_OP)
    a(f"""
    v_and_b32 v57, 1, v7
    v_lshlrev_b32 v57, 9, v57
    v_add_u32 v57, v57, v29              ; h*512 + g*16
    """)
    g.waitcnt_lds(C_P, NCW)
    for k in range(8):
        a(f"ds_read_b128 v[{64+4*k}:{67+4*k}], v56 offset:{k*128}")
    a("s_waitcnt lgkmcnt(0)")
    for k in range(8):
        c = "0" if k == 0 else "v[108:111]"
        a(f"v_mfma_f32_16x16x32_bf16 v[108:111], v[96:99], v[{64+4*k}:{67+4*k}], {c}")
    g.stamp(7)
    for ch in range(4):
        g.waitcnt_lds(C_V0 + ch, 4, sleep=(0 if ch == 3 else 1))
        for kk in range(2):
            k = 2*ch + kk
            b = 112 + kk*4
            a(f"ds_read_b64_tr_b16 v[{b}:{b+1}], v61 offset:{k*8192}")
            a(f"ds_read_b64_tr_b16 v[{b+2}:{b+3}], v61 offset:{k*8192+4096}")
        a("s_waitcnt lgkmcnt(0)")
        for kk in range(2):
            k = 2*ch + kk
            b = 112 + kk*4
            c = "0" if k == 0 else "v[100:103]"
            a(f"v_mfma_f32_16x16x32_bf16 v[100:103], v[{b}:{b+3}], v[{64+4*k}:{67+4*k}], {c}")
    g.nop(8)
    tagins(g, 100)
    a("s_mov_b64 exec, s[42:43]")
    dual_store(g, 57, 100, 48)
    a("s_mov_b64 exec, -1")
    a(f"""
    s_cmp_eq_u32 s31, 0
    s_cbranch_scc0 L_nostat
    v_mov_b32 v112, v54
    v_mov_b32 v113, v108
    s_nop 1
    v_mov_b32_dpp v114, v54 quad_perm:[1,1,1,1] row_mask:0xf bank_mask:0xf
    v_mov_b32_dpp v115, v108 quad_perm:[1,1,1,1] row_mask:0xf bank_mask:0xf
    """)
    tagins(g, 112)
    a("s_mov_b64 exec, 1")
    dual_store(g, 11, 112, 48, off=1024)
    a("s_mov_b64 exec, -1\nL_nostat:")
    g.stamp(8)
    a(f"""
    s_cmp_lt_u32 s34, 18
    s_cbranch_scc1 L_ffn
    s_cmp_lt_u32 s34, 27
    s_cbranch_scc1 L_wo
    s_cmp_eq_u32 s34, 27
    s_cbranch_scc0 L_fin
    """)
    hrole(g)
    a("s_branch L_fin")
    a("L_wo:")
    wo(g)
    a("s_branch L_fin")
    a("L_ffn:")
    ffn(g)
    a("L_fin:")
    dump_ts(g)

def hrole(g):
    a = g.a
    a(f"""
    s_mul_i32 s32, s31, 2304
    """)
    wsbase(g, 48, 32, W_HP)
    a(f"""
    s_mov_b32 s50, 0
    s_cmp_eq_u32 s31, s28
    s_cselect_b32 s50, {LOCAL}, s50
    s_add_u32 s48, s48, s50
    s_addc_u32 s49, s49, 0
    v_lshlrev_b32 v31, 4, v7             ; (lane&15)*16
    s_mul_i32 s32, s31, 144
    v_lshlrev_b32 v30, 3, v1
    v_add_u32 v30, s32, v30
    buffer_load_dwordx2 v[48:49], v30, s[36:39], 0 offen
    """)
    L = a.uniq("Lh"); Lx = a.uniq("Lhx")
    a(f"s_mov_b32 s56, {g.local_cap*4}")
    a.label(L)
    a(f"global_load_dwordx4 v[32:35], v10, s[48:49] sc1")
    a(f"global_load_dwordx4 v[36:39], v10, s[48:49] offset:1024 sc1")
    a(f"global_load_dwordx4 v[40:43], v31, s[48:49] offset:2048 sc1")
    a("s_waitcnt vmcnt(0)")
    for b in (32, 36, 40):
        for i in range(4): a(f"v_xor_b32 v{b+i}, s{52+i}, v{b+i}")
    a(f"""
    v_or3_b32 v50, v32, v33, v34
    v_or3_b32 v50, v50, v35, v36
    v_or3_b32 v50, v50, v37, v38
    v_or3_b32 v50, v50, v39, v40
    v_or3_b32 v50, v50, v41, v42
    v_or_b32 v50, v50, v43
    v_and_b32 v50, 0xff, v50
    v_cmp_ne_u32 vcc, 0, v50
    s_cbranch_vccz {Lx}
    s_cmp_eq_u32 s58, 0
    s_cbranch_scc1 {Lx}
    s_sub_u32 s58, s58, 1
    s_cmp_eq_u32 s56, 0
    s_cbranch_scc1 {L}
    s_sub_u32 s56, s56, 1
    s_cmp_eq_u32 s56, 0
    s_cbranch_scc0 {L}
    s_sub_u32 s48, s48, s50
    s_subb_u32 s49, s49, 0
    s_branch {L}
    {Lx}:
    """)
    g.stamp(9)
    a(f"""
    s_mul_i32 s32, s31, 2304
    s_add_u32 s32, s32, {LHX}
    v_add_u32 v30, s32, v10
    ds_write_b128 v30, v[32:35]
    ds_write_b128 v30, v[36:39] offset:1024
    s_mov_b64 exec, s[46:47]
    ds_write_b128 v30, v[40:43] offset:2048
    s_mov_b64 exec, -1
    s_mul_i32 s32, s31, 288
    s_add_u32 s32, s32, {LHX}
    v_add_u32 v30, s32, v10
    ; unpack x
    v_lshlrev_b32 v52, 16, v48
    v_and_b32 v53, 0xffff0000, v48
    v_lshlrev_b32 v54, 16, v49
    v_and_b32 v55, 0xffff0000, v49
    s_lshl_b32 s32, s28, 12
    s_mul_i32 s33, s31, 288
    s_add_u32 s32, s32, s33
    """)
    dual_base(g, 48, 32, W_H)
    a("s_waitcnt lgkmcnt(0)\ns_barrier")
    for p in range(8):
        a(f"ds_read_b128 v[{64+4*p}:{67+4*p}], v30 offset:{p*2304}")
    a("s_waitcnt lgkmcnt(0)")
    for e in range(0, 4, 2):
        a(f"v_pk_add_f32 v[{64+e}:{65+e}], v[{64+e}:{65+e}], v[{68+e}:{69+e}]")
        a(f"v_pk_add_f32 v[{72+e}:{73+e}], v[{72+e}:{73+e}], v[{76+e}:{77+e}]")
        a(f"v_pk_add_f32 v[{80+e}:{81+e}], v[{80+e}:{81+e}], v[{84+e}:{85+e}]")
        a(f"v_pk_add_f32 v[{88+e}:{89+e}], v[{88+e}:{89+e}], v[{92+e}:{93+e}]")
    for e in range(0, 4, 2):
        a(f"v_pk_add_f32 v[{64+e}:{65+e}], v[{64+e}:{65+e}], v[{72+e}:{73+e}]")
        a(f"v_pk_add_f32 v[{80+e}:{81+e}], v[{80+e}:{81+e}], v[{88+e}:{89+e}]")
    for e in range(0, 4, 2):
        a(f"v_pk_add_f32 v[{64+e}:{65+e}], v[{64+e}:{65+e}], v[{80+e}:{81+e}]")
    a(f"""
    v_cvt_pk_bf16_f32 v68, v64, v65
    v_cvt_pk_bf16_f32 v69, v66, v67
    v_lshlrev_b32 v64, 16, v68
    v_and_b32 v65, 0xffff0000, v68
    v_lshlrev_b32 v66, 16, v69
    v_and_b32 v67, 0xffff0000, v69
    v_add_f32 v64, v64, v52
    v_add_f32 v65, v65, v53
    v_add_f32 v66, v66, v54
    v_add_f32 v67, v67, v55
    v_cvt_pk_bf16_f32 v68, v64, v65
    v_cvt_pk_bf16_f32 v69, v66, v67
    v_lshlrev_b32 v64, 16, v68
    v_and_b32 v65, 0xffff0000, v68
    v_lshlrev_b32 v66, 16, v69
    v_and_b32 v67, 0xffff0000, v69
    """)
    tagins(g, 64)
    a("s_mov_b32 exec_lo, 0x3ffff\ns_mov_b32 exec_hi, 0")
    dual_store(g, 10, 64, 48)
    a("s_mov_b64 exec, -1")
    g.stamp(10)

def wo(g):
    a = g.a
    a(f"""
    s_lshr_b32 s32, s31, 2
    s_lshl_b32 s33, s28, 1
    s_add_u32 s32, s32, s33              ; jj
    s_lshl_b32 s32, s32, 4               ; 16 jj
    s_and_b32 s33, s31, 3
    s_lshl_b32 s33, s33, 2               ; 4(c&3)
    s_add_u32 s50, s33, s32
    s_mul_i32 s50, s50, {OPSTRIDE}
    s_mul_i32 s32, s32, {OPSTRIDE}
    """)
    wsbase(g, 48, 50, W_OP + LOCAL)
    wsbase(g, 50, 32, W_OP + 1024 + LOCAL)
    a(f"""
    v_add_u32 v30, s33, v1
    v_and_b32 v30, 15, v30
    v_mul_u32_u24 v30, {OPSTRIDE}, v30
    """)
    def issue_a():
        for i in range(4):
            a(f"global_load_dwordx4 v[{32+4*i}:{35+4*i}], v10, s[48:49] offset:{i*OPSTRIDE} sc1")
        a(f"global_load_dwordx4 v[48:51], v30, s[50:51] sc1")
    poll(g, issue_a, [48, 32, 36, 40, 44], 31, base=[48, 50])
    g.stamp(9)
    a(f"""
    v_cmp_gt_u32 vcc, 32, v1
    s_nop 1
    v_cndmask_b32 v52, v50, v48, vcc     ; m
    v_cndmask_b32 v53, v51, v49, vcc     ; l
    v_mov_b32 v54, v52
    """)
    rowred(g, [(54, "v_max_f32")])
    a(f"""
    v_sub_f32 v52, v52, v54
    v_exp_f32 v52, v52
    s_nop 0
    v_mul_f32 v53, v53, v52
    """)
    rowred(g, [(53, "v_add_f32")])
    a(f"""
    v_rcp_f32 v53, v53
    s_nop 0
    v_mul_f32 v52, v52, v53
    s_nop 1
    """)
    for i in range(4):
        a(f"v_mov_b32_dpp v{56+i}, v52 row_newbcast:{i} row_mask:0xf bank_mask:0xf")
    for e in range(4):
        a(f"v_mul_f32 v{60+e}, v{32+e}, v56")
    for i in range(1, 4):
        for e in range(4):
            a(f"v_fmac_f32 v{60+e}, v{32+4*i+e}, v{56+i}")
    a(f"""
    s_lshl_b32 s33, s31, 10
    s_add_u32 s33, s33, {LOX}
    v_add_u32 v30, s33, v10
    ds_write_b128 v30, v[60:63]
    s_lshr_b32 s32, s31, 2               ; kh
    s_lshl_b32 s33, s32, 12
    s_add_u32 s33, s33, {LOX}
    v_add_u32 v30, s33, v10
    v_lshrrev_b32 v31, 3, v1
    v_lshlrev_b32 v31, 6, v31
    v_lshl_add_u32 v31, v9, 4, v31
    v_and_b32 v48, 1, v8
    v_lshl_add_u32 v31, v48, 3, v31
    s_lshl_b32 s33, s32, 9
    s_add_u32 s33, s33, {LOB}
    v_add_u32 v48, s33, v31
    v_add_u32 v49, s33, v29
    s_mov_b32 s50, {LK + 7*2048}
    s_mov_b32 s51, {LK + 16*2048}
    s_cmp_eq_u32 s32, 0
    s_cselect_b32 s50, {LSP}, s50
    s_cselect_b32 s51, {LK}, s51
    v_add_u32 v53, s50, v25
    v_add_u32 v54, s51, v25
    s_mul_i32 s32, s28, 2304
    s_sub_u32 s33, s34, 18
    s_lshl_b32 s33, s33, 8
    s_add_u32 s32, s32, s33
    s_and_b32 s33, s31, 3
    s_lshl_b32 s33, s33, 6
    s_add_u32 s32, s32, s33
    """)
    dual_base(g, 48, 32, W_HP)
    a("s_waitcnt lgkmcnt(0)\ns_barrier")
    g.stamp(10)
    for p in range(4):
        a(f"ds_read_b128 v[{32+4*p}:{35+4*p}], v30 offset:{p*1024}")
    def rdA(i):
        b = 96 + 2*i
        if i < 9: a(f"ds_read_b64_tr_b16 v[{b}:{b+1}], v53 offset:{i*2048}")
        else:     a(f"ds_read_b64_tr_b16 v[{b}:{b+1}], v54 offset:{(i-9)*2048}")
    for i in range(10): rdA(i)
    a("s_waitcnt lgkmcnt(10)")
    a(f"""
    v_pk_add_f32 v[32:33], v[32:33], v[36:37]
    v_pk_add_f32 v[34:35], v[34:35], v[38:39]
    v_pk_add_f32 v[40:41], v[40:41], v[44:45]
    v_pk_add_f32 v[42:43], v[42:43], v[46:47]
    v_pk_add_f32 v[32:33], v[32:33], v[40:41]
    v_pk_add_f32 v[34:35], v[34:35], v[42:43]
    v_cvt_pk_bf16_f32 v32, v32, v33
    v_cvt_pk_bf16_f32 v33, v34, v35
    ds_write_b64 v48, v[32:33]
    """)
    for i in range(10, 16): rdA(i)
    a("s_waitcnt lgkmcnt(0)")
    for st in range(8):
        a(f"ds_read_b128 v[{64+4*st}:{67+4*st}], v49 offset:{st*64}")
    a("s_waitcnt lgkmcnt(0)")
    for st in range(8):
        c = "0" if st == 0 else "v[128:131]"
        a(f"v_mfma_f32_16x16x32_bf16 v[128:131], v[{96+4*st}:{99+4*st}], v[{64+4*st}:{67+4*st}], {c}")
    a(f"""
    s_and_b32 s33, s31, 3
    s_lshl_b32 s33, s33, 6
    s_add_u32 s33, s33, {LDX}
    v_add_u32 v30, s33, v29
    """)
    g.nop(6)
    a(f"""
    s_cmp_ge_u32 s31, 4
    s_cbranch_scc0 L_wo_lo
    s_mov_b64 exec, s[40:41]
    ds_write_b128 v30, v[128:131]
    s_mov_b64 exec, -1
    s_waitcnt lgkmcnt(0)
    s_barrier
    s_branch L_wo_done
    L_wo_lo:
    s_barrier
    ds_read_b128 v[132:135], v30
    s_waitcnt lgkmcnt(0)
    v_pk_add_f32 v[128:129], v[128:129], v[132:133]
    v_pk_add_f32 v[130:131], v[130:131], v[134:135]
    """)
    tagins(g, 128)
    a("s_mov_b64 exec, s[40:41]")
    dual_store(g, 29, 128, 48)
    a("s_mov_b64 exec, -1\nL_wo_done:")
    g.stamp(11)
    a(f"""
    s_cmp_eq_u32 s31, 0
    s_cbranch_scc0 L_fin
    s_mul_i32 s50, s28, 9
    s_add_u32 s50, s50, s34
    s_sub_u32 s50, s50, 18               ; r
    v_lshrrev_b32 v30, 1, v1
    v_mul_u32_u24 v30, 2304, v30
    v_and_b32 v31, 1, v1
    v_lshlrev_b32 v31, 4, v31            ; (lane&1)*16
    v_add_u32 v30, v30, v31
    s_lshl_b32 s32, s50, 5               ; r*32
    """)
    wsbase(g, 48, 32, W_FP)
    a(f"""
    s_lshl_b32 s33, s28, 12
    s_add_u32 s32, s32, s33
    s_lshl_b32 s33, s50, 4
    s_add_u32 s22, s22, s33
    s_addc_u32 s23, s23, 0
    s_mov_b32 s33, s50
    """)
    wsbase(g, 50, 32, W_H + LOCAL)
    for i in range(1, 4):
        a(f"v_add_u32 v{112+i}, {i*32*2304}, v30")
    a(f"""
    v_and_b32 v116, 31, v1
    v_lshrrev_b32 v116, 1, v116
    v_mul_u32_u24 v116, 2304, v116
    v_add_u32 v116, v116, v31
    v_add_u32 v116, {128*2304}, v116
    """)
    def issue_h():
        a(f"global_load_dwordx4 v[68:71], v31, s[50:51] sc1")
    poll(g, issue_h, [68], 29, base=[50], sleep=2)
    def issue_c():
        a(f"global_load_dwordx4 v[32:35], v30, s[48:49] sc1")
        for i in range(1, 5):
            a(f"global_load_dwordx4 v[{32+4*i}:{35+4*i}], v{112+i}, s[48:49] sc1")
    poll(g, issue_c, [32+4*i for i in range(5)], 29)
    g.stamp(12)
    a("v_cmp_gt_u32 vcc, 32, v1\ns_nop 1")
    for e in range(4): a(f"v_cndmask_b32 v{48+e}, 0, v{48+e}, vcc")
    for e in range(0, 4, 2):
        a(f"v_pk_add_f32 v[{32+e}:{33+e}], v[{32+e}:{33+e}], v[{36+e}:{37+e}]")
        a(f"v_pk_add_f32 v[{40+e}:{41+e}], v[{40+e}:{41+e}], v[{44+e}:{45+e}]")
    for e in range(0, 4, 2):
        a(f"v_pk_add_f32 v[{32+e}:{33+e}], v[{32+e}:{33+e}], v[{40+e}:{41+e}]")
    for e in range(0, 4, 2):
        a(f"v_pk_add_f32 v[{32+e}:{33+e}], v[{32+e}:{33+e}], v[{48+e}:{49+e}]")
    rowred(g, [(32+e, "v_add_f32") for e in range(4)], shifts=(2, 4, 8))
    crossrows(g, [(32+e, "v_add_f32") for e in range(4)], [36, 37, 38, 39])
    a(f"""
    v_cvt_pk_bf16_f32 v36, v32, v33
    v_cvt_pk_bf16_f32 v37, v34, v35
    v_lshlrev_b32 v32, 16, v36
    v_and_b32 v33, 0xffff0000, v36
    v_lshlrev_b32 v34, 16, v37
    v_and_b32 v35, 0xffff0000, v37
    v_add_f32 v32, v32, v68
    v_add_f32 v33, v33, v69
    v_add_f32 v34, v34, v70
    v_add_f32 v35, v35, v71
    v_cvt_pk_bf16_f32 v36, v32, v33
    v_cvt_pk_bf16_f32 v37, v34, v35
    v_lshlrev_b32 v38, 3, v1
    s_mov_b64 exec, 3
    global_store_dwordx2 v38, v[36:37], s[22:23]
    s_mov_b64 exec, -1
    s_cmp_eq_u32 s33, 0
    s_cbranch_scc0 L_noep
    s_lshl_b32 s32, s53, 8
    s_or_b32 s32, s32, s52
    s_lshl_b32 s33, s54, 16
    s_or_b32 s32, s32, s33
    s_lshl_b32 s33, s55, 24
    s_or_b32 s32, s32, s33
    v_mov_b32 v39, s32
    s_mov_b64 exec, 1
    global_store_dword v11, v39, s[26:27] sc1
    s_mov_b64 exec, -1
    L_noep:
    """)
    g.stamp(13)

def ffn(g):
    a = g.a
    srd(g, 36, 20, 4608*576*2)
    a(f"""
    v_lshrrev_b32 v30, 3, v1
    v_mul_u32_u24 v30, 1152, v30
    v_lshrrev_b32 v31, 4, v1
    v_and_b32 v31, 3, v31
    v_lshlrev_b32 v31, 1, v31
    v_and_b32 v32, 7, v1
    v_xor_b32 v32, v32, v31
    v_lshl_add_u32 v30, v32, 4, v30      ; voffset
    s_mul_i32 s50, s28, 18
    s_add_u32 s50, s50, s34              ; f
    s_mul_i32 s48, s50, {32*1152}
    s_and_b32 s32, s31, 3
    s_mul_i32 s33, s32, {8*1152}
    s_add_u32 s48, s48, s33
    s_lshr_b32 s33, s31, 2
    s_lshl_b32 s49, s33, 7
    s_add_u32 s48, s48, s49              ; + (c>>2)*128
    s_lshl_b32 s49, s33, 12
    s_lshl_b32 s32, s32, 10
    s_add_u32 s49, s49, s32
    s_add_u32 s49, s49, {LV}
    """)
    g.signal(15)
    g.waitcnt_lds(15, NCW, sleep=0)
    for m in range(5):
        lab = None
        if m == 4:
            lab = a.uniq("Lwd"); a(f"s_cmp_lt_u32 s31, 4\ns_cbranch_scc0 {lab}")
        a(f"s_add_u32 s33, s48, {m*256}\ns_add_u32 m0, s49, {m*8192}\ns_nop 0\nbuffer_load_dwordx4 v30, s[36:39], s33 offen nt lds")
        if lab: a.label(lab)
    a(f"""
    v_lshl_add_u32 v104, v6, 2, v8
    v_lshlrev_b32 v104, 6, v104
    v_and_b32 v105, 1, v9
    v_lshl_add_u32 v104, v105, 3, v104
    v_and_b32 v105, 1, v6
    v_lshlrev_b32 v105, 1, v105
    v_lshrrev_b32 v106, 1, v9
    s_and_b32 s32, s31, 1                ; tile t
    s_lshl_b32 s32, s32, 1
    v_add_u32 v106, s32, v106
    v_xor_b32 v106, v106, v105
    v_lshl_add_u32 v104, v106, 4, v104   ; inner64
    s_lshr_b32 s32, s31, 1
    s_mov_b32 s33, {LSP}
    s_cmp_eq_u32 s32, 2
    s_cselect_b32 s33, {LK}, s33
    s_cmp_eq_u32 s32, 1
    s_cselect_b32 s33, {LK + 18432}, s33
    s_cmp_eq_u32 s32, 3
    s_cselect_b32 s33, {LK + 36864}, s33
    v_add_u32 v105, s33, v104
    s_lshr_b32 s32, s31, 2
    s_mul_i32 s32, s32, 576              ; kh*9*64
    s_add_u32 s32, s32, {LHN}
    v_add_u32 v106, s32, v29
    s_lshl_b32 s32, s31, 6
    s_add_u32 s32, s32, {LGU}
    v_add_u32 v107, s32, v29
    v_mov_b32 v31, {LGU}
    v_add_u32 v103, v31, v29
    s_mul_i32 s32, s50, 2304
    s_and_b32 s33, s31, 3
    s_lshl_b32 s33, s33, 6
    s_add_u32 s32, s32, s33
    s_lshr_b32 s33, s31, 2
    s_lshl_b32 s33, s33, 8
    s_add_u32 s32, s32, s33
    """)
    wsbase(g, 44, 32, W_FP)
    a(f"""
    s_lshr_b32 s33, s31, 2
    s_lshl_b32 s33, s33, 12
    s_add_u32 s33, s33, {LV}
    v_add_u32 v102, s33, v25
    """)
    a("s_cmp_lt_u32 s31, 3\ns_cbranch_scc0 L_ffn_bar")
    a("s_lshl_b32 s32, s28, 12")
    wsbase(g, 48, 32, W_H + LOCAL)
    a("v_lshlrev_b32 v31, 4, v7")
    def issue_hh():
        a(f"global_load_dwordx4 v[32:35], v10, s[48:49] sc1")
        a(f"global_load_dwordx4 v[36:39], v10, s[48:49] offset:1024 sc1")
        a(f"global_load_dwordx4 v[40:43], v31, s[48:49] offset:2048 sc1")
    poll(g, issue_hh, [32, 36, 40], 30, base=[48], sleep=g.opt.get("hsleep", 4))
    g.stamp(9)
    for r in range(40, 44):
        a(f"v_cndmask_b32 v{r}, 0, v{r}, s[46:47]")
    ln_stats(g, list(range(32, 44)), {r: "s[46:47]" for r in range(40, 44)}, 48)
    a(f"""
    s_cmp_eq_u32 s31, 1
    s_cbranch_scc0 L_ln1
    v_mov_b32 v32, v36
    v_mov_b32 v33, v37
    v_mov_b32 v34, v38
    v_mov_b32 v35, v39
    L_ln1:
    s_cmp_eq_u32 s31, 2
    s_cbranch_scc0 L_ln2
    v_mov_b32 v32, v40
    v_mov_b32 v33, v41
    v_mov_b32 v34, v42
    v_mov_b32 v35, v43
    L_ln2:
    """)
    ln_apply(g, [32, 33, 34, 35], 48, [44, 45])
    a(f"""
    v_lshrrev_b32 v31, 3, v1
    v_lshlrev_b32 v31, 6, v31
    v_lshl_add_u32 v31, v9, 4, v31
    v_and_b32 v30, 1, v8
    v_lshl_add_u32 v31, v30, 3, v31
    s_lshl_b32 s32, s31, 9
    s_add_u32 s32, s32, {LHN}
    v_add_u32 v31, s32, v31
    s_mov_b64 s[48:49], -1
    s_cmp_eq_u32 s31, 2
    s_cselect_b64 s[48:49], s[46:47], s[48:49]
    s_mov_b64 exec, s[48:49]
    ds_write_b64 v31, v[44:45]
    s_mov_b64 exec, -1
    L_ffn_bar:
    s_waitcnt vmcnt(0) lgkmcnt(0)
    s_barrier
    """)
    g.stamp(10)
    for st in range(9):
        a(f"ds_read_b128 v[{32+4*st}:{35+4*st}], v106 offset:{st*64}")
    for s9 in range(9):
        for hf in range(2):
            b = 112 + s9*4 + hf*2
            a(f"ds_read_b64_tr_b16 v[{b}:{b+1}], v105 offset:{(2*s9+hf)*1024}")
    a("s_waitcnt lgkmcnt(0)")
    for s9 in range(9):
        c = "0" if s9 == 0 else "v[108:111]"
        a(f"v_mfma_f32_16x16x32_bf16 v[108:111], v[{112+4*s9}:{115+4*s9}], v[{32+4*s9}:{35+4*s9}], {c}")
    for m in range(5):
        a(f"ds_read_b64_tr_b16 v[{68+4*m}:{69+4*m}], v102 offset:{m*8192}")
        a(f"ds_read_b64_tr_b16 v[{70+4*m}:{71+4*m}], v102 offset:{m*8192+2048}")
    g.nop(2)
    a(f"""
    s_mov_b64 exec, s[40:41]
    ds_write_b128 v107, v[108:111]
    s_mov_b64 exec, -1
    s_waitcnt lgkmcnt(0)
    s_barrier
    """)
    for i in range(8):
        a(f"ds_read_b128 v[{32+4*i}:{35+4*i}], v103 offset:{i*64}")
    a("s_waitcnt lgkmcnt(0)")
    for i in range(4):
        for e in range(0, 4, 2):
            a(f"v_pk_add_f32 v[{32+4*i+e}:{33+4*i+e}], v[{32+4*i+e}:{33+4*i+e}], v[{48+4*i+e}:{49+4*i+e}]")
    for i in range(0, 8, 2):
        a(f"""
        v_cvt_pk_bf16_f32 v48, v{32+i}, v{33+i}
        v_cvt_pk_bf16_f32 v49, v{40+i}, v{41+i}
        v_lshlrev_b32 v50, 16, v48
        v_and_b32 v51, 0xffff0000, v48
        v_lshlrev_b32 v52, 16, v49
        v_and_b32 v53, 0xffff0000, v49
        v_mul_f32 v50, v50, v52
        v_mul_f32 v51, v51, v53
        v_cvt_pk_bf16_f32 v{56+i//2}, v50, v51
        """)
    g.nop(2)
    for m in range(5):
        a(f"v_mfma_f32_16x16x32_bf16 v[{112+4*m}:{115+4*m}], v[{68+4*m}:{71+4*m}], v[56:59], 0")
    g.nop(4)
    for m in range(5): tagins(g, 112+4*m)
    a("s_mov_b64 exec, s[40:41]")
    for m in range(4):
        a(f"global_store_dwordx4 v29, v[{112+4*m}:{115+4*m}], s[44:45] offset:{m*512} sc1")
    a(f"""
    s_cmp_lt_u32 s31, 4
    s_cbranch_scc0 L_ffn_e
    global_store_dwordx4 v29, v[128:131], s[44:45] offset:2048 sc1
    L_ffn_e:
    s_mov_b64 exec, -1
    """)
    g.stamp(11)

def gen(**kw):
    g = G(**kw)
    prologue(g)
    loader(g)
    g.a("L_compute:")
    compute(g)
    g.a("L_end:\ns_endpgm")
    return g.a.text()

if __name__ == "__main__":
    import build
    kw = {}
    for x in sys.argv[1:]:
        if x.startswith("--"):
            k, _, v = x[2:].partition("=")
            kw[k] = int(v) if v else True
    out = [x for x in sys.argv[1:] if not x.startswith("--")][0]
    body = gen(**kw)
    open(out, "w").write(single(body, 256, 768, LDS_BYTES, 160, sgpr=100))
    print(build.build(out))
```
